```python
import torch

def _softmax(x, axis=-1):
    return torch.softmax(x, dim=axis)
def _gelu(x):
    return torch.nn.functional.gelu(x, approximate="tanh")
def _silu(x):
    return torch.nn.functional.silu(x)
def _sigmoid(x):
    return torch.sigmoid(x)
def _layernorm(x, axis=-1, eps=1e-5):
    m = x.mean(dim=axis, keepdim=True)
    v = x.var(dim=axis, keepdim=True, unbiased=False)
    return (x - m) / torch.sqrt(v + eps)
def _scatter_add(tgt, idx, src, axis=0):
    return tgt.clone().index_add_(axis, idx, src)
def _segment_sum(src, seg, n):
    out = torch.zeros((n,) + src.shape[1:], dtype=src.dtype)
    return out.index_add_(0, seg, src)
def _pad(x, pw):
    flat = tuple(v for pair in reversed(pw) for v in pair)
    return torch.nn.functional.pad(x, flat)

kernel_name = 'concat_heads__ssm_conv_s5__mha_block__prompt'

def setup_inputs():

    _w = (lambda a: (lambda t: t.to(torch.bfloat16) if t.is_floating_point() else t)(torch.as_tensor(a)))
    def _A_setup():
        B, S, D = 1, 2048, 448
        P = D
        Lambda_re = -0.5 * (lambda _x: torch.exp(torch.as_tensor(_x)))((lambda *s: torch.randn(*s, dtype=torch.bfloat16) * 0.4)(P))
        Lambda_im = (lambda *s: torch.randn(*s, dtype=torch.bfloat16) * 0.8)(P) * 1.0
        B_re = (lambda *s: torch.randn(*s, dtype=torch.bfloat16) * 0.4)(P, D) * (D ** -0.5)
        B_im = (lambda *s: torch.randn(*s, dtype=torch.bfloat16) * 0.4)(P, D) * (D ** -0.5)
        C_re = (lambda *s: torch.randn(*s, dtype=torch.bfloat16) * 0.4)(D, P) * (P ** -0.5)
        C_im = (lambda *s: torch.randn(*s, dtype=torch.bfloat16) * 0.4)(D, P) * (P ** -0.5)
        log_dt = (lambda *s: torch.randn(*s, dtype=torch.bfloat16) * 0.4)(P) * 0.3 - 2.0
        Dskip = (lambda *s: torch.randn(*s, dtype=torch.bfloat16) * 0.05)(D)
        return {
            "x": _w((lambda *s: torch.randn(*s, dtype=torch.bfloat16) * 0.05)(B, S, D)),
            "Lambda_re": _w(Lambda_re),
            "Lambda_im": _w(Lambda_im),
            "B_re": _w(B_re),
            "B_im": _w(B_im),
            "C_re": _w(C_re),
            "C_im": _w(C_im),
            "log_dt": _w(log_dt),
            "Dskip": _w(Dskip),
        }
    _A_in = _A_setup()

    def _B_setup():
        B, S, D, H = 1, 2048, 448, 16
        return {
            "x": _w((lambda *s: torch.randn(*s, dtype=torch.bfloat16) * 0.2)(B, S, D)),
            "wqkv": _w((lambda *s: torch.randn(*s, dtype=torch.bfloat16) * 0.2)(D, 3 * D)),
            "wo": _w((lambda *s: torch.randn(*s, dtype=torch.bfloat16) * 0.05)(D, D)),
        }
    _B_in = _B_setup()

    return {
        "A_x": _A_in["x"],
        "A_Lambda_re": _A_in["Lambda_re"],
        "A_Lambda_im": _A_in["Lambda_im"],
        "A_B_re": _A_in["B_re"],
        "A_B_im": _A_in["B_im"],
        "A_C_re": _A_in["C_re"],
        "A_C_im": _A_in["C_im"],
        "A_log_dt": _A_in["log_dt"],
        "A_Dskip": _A_in["Dskip"],
        "B_x": _B_in["x"],
        "B_wqkv": _B_in["wqkv"],
        "B_wo": _B_in["wo"],
    }

def reference(A_x, A_Lambda_re, A_Lambda_im, A_B_re, A_B_im, A_C_re, A_C_im, A_log_dt, A_Dskip, B_x, B_wqkv, B_wo):
    def _A_ref(x, Lambda_re, Lambda_im, B_re, B_im, C_re, C_im, log_dt, Dskip):
        Bsz, L, H = x.shape
        Lam = Lambda_re + 1j * Lambda_im
        Bmat = B_re + 1j * B_im
        Cmat = C_re + 1j * C_im
        dt = torch.exp(log_dt)
        Lam_bar = torch.exp(dt * Lam)
        B_bar = ((Lam_bar - 1.0) / Lam)[:, None] * Bmat
        Bu = torch.einsum("bld,pd->blp", x + 0j, B_bar)
        h = torch.zeros_like(Bu[:, 0, :])
        hs = []
        for t in range(L):
            h = Lam_bar[None, :] * h + Bu[:, t, :]
            hs.append(h)
        hseq = torch.stack(hs, 1)
        y = 2.0 * torch.einsum("blp,dp->bld", hseq, Cmat).real + x * Dskip[None, None, :]
        return y

    def _B_ref(x, wqkv, wo):
        B, S, D = x.shape
        H = 16
        Dh = D // H
        qkv = (lambda x, *d: x.permute(*d))((x @ wqkv).reshape(B, S, 3, H, Dh), 2, 0, 3, 1, 4)
        q, k, v = qkv[0], qkv[1], qkv[2]
        scores = torch.einsum("bhqd,bhkd->bhqk", q, k) * (Dh ** -0.5)
        p = _softmax(scores, axis=-1)
        o = torch.einsum("bhqk,bhkd->bhqd", p, v)
        return (lambda x, *d: x.permute(*d))(o, 0, 2, 1, 3).reshape(B, S, D) @ wo

    a = _A_ref(A_x, A_Lambda_re, A_Lambda_im, A_B_re, A_B_im, A_C_re, A_C_im, A_log_dt, A_Dskip)
    b = _B_ref(B_x, B_wqkv, B_wo)
    return torch.concatenate([a, b], axis=-1)
```

```python
class Asm:
    def __init__(self):
        self.lines = []
    def __call__(self, s):
        for ln in s.strip('\n').split('\n'):
            self.lines.append('    ' + ln.strip())
    def label(self, l):
        self.lines.append(l + ':')
    def raw(self, s):
        self.lines.append(s)
    def text(self):
        return '\n'.join(self.lines) + '\n'

def vr(b, n=1):
    return f'v{b}' if n == 1 else f'v[{b}:{b+n-1}]'
def sr(b, n=1):
    return f's{b}' if n == 1 else f's[{b}:{b+n-1}]'

KA = dict(A_x=0, Lre=8, Lim=16, Bre=24, Bim=32, Cre=40, Cim=48, logdt=56, Dskip=64,
          B_x=72, wqkv=80, wo=88, out=96, dbg=104, ws=112)
WS_QF = 0x000000
WS_KF = 0x200000
WS_VF = 0x400000
WS_BU = 0x600000
WS_EE = 0xD00000
WS_HF = 0xD40000
WS_OF = 0x10C0000
WS_END = 0x12C0000

def srd(a, sbase, karg_off=None, size=None, ptr=None, add=0):
    if add:
        a(f's_add_u32 s{sbase}, s{ptr}, {add}')
        a(f's_addc_u32 s{sbase+1}, s{ptr+1}, 0')
        a(f's_and_b32 s{sbase+1}, s{sbase+1}, 0xffff')
    else:
        a(f's_mov_b32 s{sbase}, s{ptr}')
        a(f's_and_b32 s{sbase+1}, s{ptr+1}, 0xffff')
    a(f's_mov_b32 s{sbase+2}, {size}')
    a(f's_mov_b32 s{sbase+3}, 0x00020000')

def kernel_header(a, name):
    a.raw(f'.globl {name}')
    a.raw('.p2align 8')
    a.raw(f'.type {name},@function')
    a.label(name)

def kernel_desc(name, vgpr, sgpr=102, accum=None):
    accum = accum if accum is not None else (vgpr + 3) // 4 * 4
    return f""".p2align 6
.amdhsa_kernel {name}
  .amdhsa_next_free_vgpr {vgpr}
  .amdhsa_next_free_sgpr {sgpr}
  .amdhsa_accum_offset {accum}
  .amdhsa_group_segment_fixed_size 0
  .amdhsa_kernarg_size 120
  .amdhsa_user_sgpr_count 2
  .amdhsa_user_sgpr_kernarg_segment_ptr 1
  .amdhsa_system_sgpr_workgroup_id_x 1
.end_amdhsa_kernel
"""

def lam_params(a, vp2, T, sL, out_lre, out_lim, coef=None):
    t0,t1,t2,t3,t4,t5,t6,t7 = [T+i for i in range(8)]
    a(f'buffer_load_ushort v{t0}, v{vp2}, s[{sL}:{sL+3}], 0 offen')
    a(f'buffer_load_ushort v{t1}, v{vp2}, s[{sL+4}:{sL+7}], 0 offen')
    a(f'buffer_load_ushort v{t2}, v{vp2}, s[{sL+8}:{sL+11}], 0 offen')
    a('s_waitcnt vmcnt(0)')
    a(f'v_lshlrev_b32 v{t0}, 16, v{t0}')
    a(f'v_lshlrev_b32 v{t1}, 16, v{t1}')
    a(f'v_lshlrev_b32 v{t2}, 16, v{t2}')
    a(f'v_mul_f32 v{t2}, 0x3fb8aa3b, v{t2}')
    a(f'v_exp_f32 v{t2}, v{t2}')
    a('s_nop 1')
    a(f'v_cvt_pk_bf16_f32 v{t2}, v{t2}, v{t2}')
    a(f'v_and_b32 v{t2}, 0xffff0000, v{t2}')
    a(f'v_mul_f32 v{t3}, v{t2}, v{t0}')
    a(f'v_mul_f32 v{t4}, v{t2}, v{t1}')
    a(f'v_mul_f32 v{t3}, 0x3fb8aa3b, v{t3}')
    a(f'v_exp_f32 v{t3}, v{t3}')
    a(f'v_mul_f32 v{t4}, 0.15915494, v{t4}')
    a(f'v_fract_f32 v{t4}, v{t4}')
    a(f'v_sin_f32 v{t5}, v{t4}')
    a(f'v_cos_f32 v{t6}, v{t4}')
    a('s_nop 1')
    a(f'v_mul_f32 v{out_lre}, v{t3}, v{t6}')
    a(f'v_mul_f32 v{out_lim}, v{t3}, v{t5}')
    if coef:
        cr, ci = coef
        a(f'v_add_f32 v{t3}, -1.0, v{out_lre}')
        a(f'v_mul_f32 v{t4}, v{t0}, v{t0}')
        a(f'v_fmac_f32 v{t4}, v{t1}, v{t1}')
        a(f'v_rcp_f32 v{t4}, v{t4}')
        a(f'v_mul_f32 v{t5}, v{t3}, v{t0}')
        a(f'v_fmac_f32 v{t5}, v{out_lim}, v{t1}')
        a(f'v_mul_f32 v{t6}, v{out_lim}, v{t0}')
        a(f'v_fma_f32 v{t6}, -v{t3}, v{t1}, v{t6}')
        a(f'v_mul_f32 v{cr}, v{t5}, v{t4}')
        a(f'v_mul_f32 v{ci}, v{t6}, v{t4}')

def csq(a, dr, di, sr_, si, t):
    a(f'v_mul_f32 v{t}, v{si}, v{si}')
    a(f'v_mul_f32 v{di}, v{sr_}, v{si}') if di != si else a(f'v_mul_f32 v{di}, v{sr_}, v{si}')
    a(f'v_fma_f32 v{dr}, v{sr_}, v{sr_}, -v{t}')
    a(f'v_add_f32 v{di}, v{di}, v{di}')
```

```python
from common import *
SLOT = 40960
QSCALE = (28 ** -0.5) * 1.4426950408889634
import struct
def f2u(x): return struct.unpack('<I', struct.pack('<f', x))[0]

def xtype_read_addrs(a, dst, vl, t0, t1):
    a(f'v_and_b32 v{t0}, 31, v{vl}')
    a(f'v_lshrrev_b32 v{t1}, 5, v{vl}')
    a(f'v_bfe_u32 v{dst+3}, v{t0}, 1, 3')
    a(f'v_xor_b32 v{t1}, v{t1}, v{dst+3}')
    a(f'v_lshlrev_b32 v{t0}, 7, v{t0}')
    for s in range(4):
        a(f'v_xor_b32 v{dst+s}, {2*s}, v{t1}')
        a(f'v_lshl_add_u32 v{dst+s}, v{dst+s}, 4, v{t0}')

def gemm_loop(a, nstage, per, reads, mfmas, dma, nslots=3, first_wait_extra=0):
    for s in range(min(nslots, nstage)):
        dma(s)
    a(f's_waitcnt vmcnt({per*(min(nslots,nstage)-1)})')
    a('s_barrier')
    n = reads(0, 0)
    T = 4 * nstage
    for t in range(T):
        nxt = t + 1
        if nxt < T and nxt % 4 == 0:
            st = nxt // 4
            infl = per if st + 1 < nstage else 0
            a(f's_waitcnt vmcnt({infl}) lgkmcnt(0)')
            a('s_barrier')
            n = reads(nxt, nxt & 1)
            if st + 2 < nstage:
                dma(st + 2)
        elif nxt < T:
            n = reads(nxt, nxt & 1)
            a(f's_waitcnt lgkmcnt({n})')
        else:
            a('s_waitcnt lgkmcnt(0)')
        mfmas(t, t & 1)

def gen_k1(a):
    name = 'k1_proj_kernel'
    kernel_header(a, name)
    a('s_cmp_ge_u32 s2, 240')
    a('s_cbranch_scc1 K1_END')
    a('s_load_dwordx2 s[40:41], s[0:1], 112')
    a('v_lshrrev_b32 v1, 6, v0')
    a('v_and_b32 v2, 63, v0')
    a('s_nop 0')
    a('v_readfirstlane_b32 s3, v1')
    a('s_cmp_ge_u32 s2, 128')
    a('s_cbranch_scc1 K1_A')
    VL = 2
    a('s_load_dwordx2 s[36:37], s[0:1], 72')
    a('s_load_dwordx2 s[38:39], s[0:1], 80')
    a('s_and_b32 s20, s2, 7')
    a('s_lshl_b32 s20, s20, 1')
    a('s_bfe_u32 s21, s2, 0x10003')
    a('s_add_u32 s20, s20, s21')
    a('s_lshr_b32 s21, s2, 4')
    a('s_and_b32 s22, s3, 1')
    a('s_lshr_b32 s23, s3, 1')
    a('s_lshl_b32 s24, s20, 7')
    a('s_lshl_b32 s25, s3, 5')
    a('s_add_u32 s24, s24, s25')
    a('v_lshrrev_b32 v6, 3, v2')
    a('v_add_u32 v6, s24, v6')
    a('v_mul_u32_u24 v6, 896, v6')
    a('v_and_b32 v7, 7, v2')
    a('v_lshrrev_b32 v8, 4, v2')
    a('v_xor_b32 v7, v7, v8')
    a('v_lshl_add_u32 v4, v7, 4, v6')
    a('v_xor_b32 v7, 4, v7')
    a('v_lshl_add_u32 v5, v7, 4, v6')
    a('s_mul_i32 s24, s3, 384')
    a('s_mul_i32 s25, s21, 112')
    a('s_mov_b32 s26, 0x7ffffff0')
    for j in range(6):
        a(f'v_add_u32 v6, s24, v2')
        if j: a(f'v_add_u32 v6, {64*j}, v6')
        a('v_mul_u32_u24 v7, 2731, v6')
        a('v_lshrrev_b32 v7, 16, v7')
        a('v_mul_u32_u24 v8, 24, v7')
        a('v_sub_u32 v8, v6, v8')
        a('v_bfe_u32 v9, v7, 1, 1')
        a('v_lshlrev_b32 v9, 2, v9')
        a('v_xor_b32 v8, v8, v9')
        a('v_mul_u32_u24 v9, 37, v8')
        a('v_lshrrev_b32 v9, 8, v9')
        a('v_mul_u32_u24 v16, 7, v9')
        a('v_sub_u32 v16, v8, v16')
        a('v_mul_u32_u24 v7, 2688, v7')
        a('v_mul_u32_u24 v9, 896, v9')
        a('v_add3_u32 v7, v7, v9, s25')
        a(f'v_lshl_add_u32 v{10+j}, v16, 4, v7')
        a('v_cmp_lt_u32 vcc, 20, v8')
        a('v_mov_b32 v9, s26')
        a('s_nop 0')
        a(f'v_cndmask_b32 v{10+j}, v{10+j}, v9, vcc')
    xtype_read_addrs(a, 16, VL, 6, 7)
    a('s_lshl_b32 s24, s22, 13')
    for s in range(4):
        a(f'v_add_u32 v{16+s}, s24, v{16+s}')
        a(f'v_add_u32 v{20+s}, {2*SLOT}, v{16+s}')
    a('v_lshrrev_b32 v6, 5, v2')
    a('v_lshlrev_b32 v6, 3, v6')
    a('v_bfe_u32 v7, v2, 2, 2')
    a('v_add_u32 v6, v6, v7')
    a('v_mul_u32_u24 v6, 384, v6')
    a('v_add_u32 v6, 16384, v6')
    a('v_bfe_u32 v7, v2, 4, 1')
    a('v_lshlrev_b32 v7, 5, v7')
    a('v_and_b32 v8, 3, v2')
    a('v_lshl_add_u32 v7, v8, 3, v7')
    a('s_mul_i32 s24, s23, 56')
    a('v_add_u32 v7, s24, v7')
    a('v_bfe_u32 v8, v2, 3, 1')
    a('v_lshlrev_b32 v8, 6, v8')
    for sg in range(3):
        a(f'v_add_u32 v9, {112*sg}, v7')
        a('v_xor_b32 v9, v9, v8')
        a(f'v_add_u32 v{24+sg}, v9, v6')
        a(f'v_add_u32 v{27+sg}, {2*SLOT}, v{24+sg}')
    a('s_waitcnt lgkmcnt(0)')
    srd(a, 4, ptr=36, size=2048*896)
    srd(a, 8, ptr=38, size=448*2688)
    srd(a, 12, ptr=40, size=0x600000)
    ACC = 32
    XF = 128
    WF = 144
    for r in range(96):
        a(f'v_mov_b32 v{ACC+r}, 0')
    a('s_lshl_b32 s27, s3, 12')
    a('s_mul_i32 s28, s3, 6144')
    def dma(st):
        base = (st % 3) * SLOT
        for j in range(4):
            a(f's_add_u32 m0, s27, {base + j*1024}')
            a(f's_mov_b32 s29, {128*st + 7168*j}')
            a(f'buffer_load_dwordx4 v{4+(j&1)}, s[4:7], s29 offen lds')
        a(f's_mov_b32 s29, {64*2688*st}')
        for j in range(6):
            a(f's_add_u32 m0, s28, {base + 16384 + j*1024}')
            a('s_nop 0')
            a(f'buffer_load_dwordx4 v{10+j}, s[8:11], s29 offen lds')
    def reads(t, buf):
        st, s = t // 4, t % 4
        slot = st % 3
        off = (slot % 2) * SLOT if slot < 2 else 0
        xa = (16 if slot < 2 else 20) + s
        tr = 24 if slot < 2 else 27
        for i in range(2):
            a(f'ds_read_b128 {vr(XF+buf*8+i*4,4)}, v{xa} offset:{off+i*4096}')
        for sg in range(3):
            for sec in range(2):
                a(f'ds_read_b64_tr_b16 {vr(WF+buf*12+sg*4+sec*2,2)}, v{tr+sg} offset:{off+s*6144+sec*1536}')
        return 8
    def mfmas(t, buf):
        for i in range(2):
            x = vr(XF+buf*8+i*4, 4)
            for sg in range(3):
                w = vr(WF+buf*12+sg*4, 4)
                c = vr(ACC+(i*3+sg)*16, 16)
                if sg < 2: a(f'v_mfma_f32_32x32x16_bf16 {c}, {w}, {x}, {c}')
                else:      a(f'v_mfma_f32_32x32x16_bf16 {c}, {x}, {w}, {c}')
    gemm_loop(a, 7, 10, reads, mfmas, dma)
    a('s_lshl_b32 s24, s21, 1')
    a('s_add_u32 s24, s24, s23')
    a('s_lshl_b32 s24, s24, 6')
    a('s_lshl_b32 s25, s20, 2')
    a('s_add_u32 s24, s24, s25')
    a('s_lshl_b32 s25, s22, 1')
    a('s_add_u32 s24, s24, s25')
    a('s_lshl_b32 s24, s24, 11')
    a('v_lshlrev_b32 v4, 4, v2')
    a('v_add_u32 v4, s24, v4')
    a('s_mov_b32 s30, 0')
    a('s_mov_b32 s31, -1')
    a('v_and_b32 v5, 31, v2')
    a('v_cmp_le_u32 s[32:33], 28, v5')
    a('v_cmp_eq_u32 vcc, 28, v5')
    a('v_mov_b32 v6, 0x3f803f80')
    a('v_mov_b32 v8, 0')
    a('v_cndmask_b32 v7, v8, v6, vcc')
    a(f's_mov_b32 s34, {f2u(QSCALE)}')
    a('s_nop 7')
    for i in range(2):
        for sg in range(3):
            c = ACC + (i*3+sg)*16
            P = XF + ((i*3+sg) % 2) * 8
            if sg == 0:
                for r in range(16):
                    a(f'v_mul_f32 v{c+r}, s34, v{c+r}')
            for j in range(8):
                a(f'v_cvt_pk_bf16_f32 v{P+j}, v{c+2*j}, v{c+2*j+1}')
            if sg == 0:
                a(f'v_cndmask_b32 v{P+6}, v{P+6}, v8, s[30:31]')
                a(f'v_cndmask_b32 v{P+7}, v{P+7}, v8, s[30:31]')
            elif sg == 1:
                a(f'v_cndmask_b32 v{P+6}, v{P+6}, v6, s[30:31]')
                a(f'v_cndmask_b32 v{P+7}, v{P+7}, v8, s[30:31]')
            else:
                for j in range(8):
                    a(f'v_cndmask_b32 v{P+j}, v{P+j}, v7, s[32:33]')
            a(f's_mov_b32 s29, {sg*0x200000 + i*2048}')
            a(f'buffer_store_dwordx4 {vr(P,4)}, v4, s[12:15], s29 offen')
            a(f'buffer_store_dwordx4 {vr(P+4,4)}, v4, s[12:15], s29 offen offset:1024')
            a('s_nop 1')
    a('s_endpgm')
    a.label('K1_A')
    a('s_load_dwordx2 s[36:37], s[0:1], 0')
    a('s_load_dwordx4 s[44:47], s[0:1], 24')
    a('s_load_dwordx4 s[48:51], s[0:1], 8')
    a('s_load_dwordx2 s[52:53], s[0:1], 56')
    a('s_sub_u32 s19, s2, 128')
    a('s_and_b32 s20, s19, 7')
    a('s_lshl_b32 s20, s20, 1')
    a('s_bfe_u32 s21, s19, 0x10003')
    a('s_add_u32 s20, s20, s21')
    a('s_lshr_b32 s21, s19, 4')
    a('s_and_b32 s22, s3, 1')
    a('s_lshr_b32 s23, s3, 1')
    a('s_lshl_b32 s24, s20, 7')
    a('s_lshl_b32 s25, s23, 6')
    a('s_add_u32 s24, s24, s25')
    a('s_lshl_b32 s25, s22, 4')
    a('s_add_u32 s24, s24, s25')
    a('v_lshrrev_b32 v6, 5, v2')
    a('v_lshlrev_b32 v6, 5, v6')
    a('v_bfe_u32 v7, v2, 3, 2')
    a('v_add3_u32 v6, v6, v7, s24')
    a('v_mul_u32_u24 v6, 896, v6')
    a('v_and_b32 v7, 7, v2')
    a('v_lshrrev_b32 v8, 4, v2')
    a('v_xor_b32 v7, v7, v8')
    a('v_xor_b32 v9, 4, v7')
    a('v_lshl_add_u32 v4, v7, 4, v6')
    a('v_lshl_add_u32 v5, v9, 4, v6')
    a('s_lshl_b32 s24, s21, 1')
    a('s_add_u32 s24, s24, s23')
    a('s_lshl_b32 s24, s24, 5')
    a('v_lshrrev_b32 v6, 3, v2')
    a('v_add_u32 v6, s24, v6')
    a('v_mul_u32_u24 v6, 896, v6')
    a('v_lshl_add_u32 v10, v7, 4, v6')
    a('v_lshl_add_u32 v11, v9, 4, v6')
    xtype_read_addrs(a, 16, VL, 6, 7)
    a('s_lshl_b32 s24, s22, 13')
    a('s_lshl_b32 s25, s23, 13')
    a('s_add_u32 s25, s25, 16384')
    for s in range(4):
        a(f'v_add_u32 v{24+s}, s25, v{16+s}')
        a(f'v_add_u32 v{28+s}, {2*SLOT}, v{24+s}')
        a(f'v_add_u32 v{16+s}, s24, v{16+s}')
        a(f'v_add_u32 v{20+s}, {2*SLOT}, v{16+s}')
    a('s_waitcnt lgkmcnt(0)')
    srd(a, 4, ptr=36, size=2048*896)
    a('s_cmp_eq_u32 s22, 0')
    a('s_cselect_b32 s38, s44, s46')
    a('s_cselect_b32 s39, s45, s47')
    srd(a, 8, ptr=38, size=448*896)
    srd(a, 12, ptr=40, size=WS_HF)
    srd(a, 56, ptr=48, size=896)
    srd(a, 60, ptr=50, size=896)
    srd(a, 64, ptr=52, size=896)
    ACC = 32
    XF = 96; WF = 112
    for r in range(64):
        a(f'v_mov_b32 v{ACC+r}, 0')
    a('s_lshl_b32 s27, s3, 12')
    def dma(st):
        base = (st % 3) * SLOT
        for j in range(4):
            a(f's_add_u32 m0, s27, {base + j*1024}')
            a(f's_mov_b32 s29, {128*st + 3584*j}')
            a(f'buffer_load_dwordx4 v{4+(j&1)}, s[4:7], s29 offen lds')
        for j in range(4):
            a(f's_add_u32 m0, s27, {base + 16384 + j*1024}')
            a(f's_mov_b32 s29, {128*st + 7168*j}')
            a(f'buffer_load_dwordx4 v{10+(j&1)}, s[8:11], s29 offen lds')
    def reads(t, buf):
        st, s = t // 4, t % 4
        slot = st % 3
        off = slot * SLOT if slot < 2 else 0
        xa = (16 if slot < 2 else 20) + s
        wa = (24 if slot < 2 else 28) + s
        for i in range(2):
            a(f'ds_read_b128 {vr(XF+buf*8+i*4,4)}, v{xa} offset:{off+i*4096}')
        for i in range(2):
            a(f'ds_read_b128 {vr(WF+buf*8+i*4,4)}, v{wa} offset:{off+i*4096}')
        return 4
    def mfmas(t, buf):
        for i in range(2):
            for p in range(2):
                c = vr(ACC+(i*2+p)*16, 16)
                a(f'v_mfma_f32_32x32x16_bf16 {c}, {vr(XF+buf*8+i*4,4)}, {vr(WF+buf*8+p*4,4)}, {c}')
    gemm_loop(a, 7, 8, reads, mfmas, dma)
    a('s_lshl_b32 s24, s21, 1')
    a('s_add_u32 s24, s24, s23')
    a('s_lshl_b32 s25, s24, 5')
    a('v_and_b32 v4, 31, v2')
    a('v_add_u32 v4, s25, v4')
    a('v_lshlrev_b32 v5, 1, v4')
    LR, LI, CR, CI, T = 6, 7, 8, 9, 16
    lam_params(a, 5, T, 56, LR, LI, coef=(CR, CI))
    a('s_lshl_b32 s25, s20, 1')
    a('s_add_u32 s25, s25, s22')
    a('s_mul_i32 s26, s25, 14')
    a('s_add_u32 s26, s26, s24')
    a('s_lshl_b32 s26, s26, 14')
    a(f's_add_u32 s26, s26, {WS_BU}')
    a('v_lshlrev_b32 v10, 4, v2')
    HR, HI = 12, 13
    a(f'v_mov_b32 v{HR}, 0')
    a(f'v_mov_b32 v{HI}, 0')
    for it in range(2):
        R = ACC + (it*2)*16; I = R + 16
        for r in range(16):
            a(f'v_mul_f32 v14, v{CI}, v{I+r}')
            a(f'v_mul_f32 v15, v{CI}, v{R+r}')
            a(f'v_fma_f32 v{R+r}, v{CR}, v{R+r}, -v14')
            a(f'v_fma_f32 v{I+r}, v{CR}, v{I+r}, v15')
            a(f'v_fma_f32 v14, v{LR}, v{HR}, v{R+r}')
            a(f'v_fma_f32 v15, v{LR}, v{HI}, v{I+r}')
            a(f'v_fma_f32 v15, v{LI}, v{HR}, v15')
            a(f'v_fma_f32 v{HR}, -v{LI}, v{HI}, v14')
            a(f'v_mov_b32 v{HI}, v15')
            if r % 4 == 3:
                q = it*4 + r//4
                a(f'buffer_store_dwordx4 {vr(R+r-3,4)}, v10, s[12:15], s26 offen offset:{(q%4)*1024}') if False else None
        for part in range(2):
            a(f's_add_u32 s29, s26, {part*8192 + it*4096}')
            for q in range(4):
                a(f'buffer_store_dwordx4 {vr(R+part*16+q*4,4)}, v10, s[12:15], s29 offen offset:{q*1024}')
    for k in range(5):
        csq(a, LR, LI, LR, LI, 14)
    a(f'v_mov_b32 v16, v{HR}')
    a(f'v_mov_b32 v17, v{HR}')
    a(f'v_mov_b32 v18, v{HI}')
    a(f'v_mov_b32 v19, v{HI}')
    a('s_nop 1')
    a('v_permlane32_swap_b32 v16, v17')
    a('v_permlane32_swap_b32 v18, v19')
    a('s_nop 1')
    a(f'v_fma_f32 v20, v{LR}, v16, v17')
    a(f'v_fma_f32 v21, v{LR}, v18, v19')
    a(f'v_fma_f32 v20, -v{LI}, v18, v20')
    a(f'v_fma_f32 v21, v{LI}, v16, v21')
    a('s_mov_b32 s30, 0')
    a('s_mov_b32 s31, -1')
    a(f'v_cndmask_b32 v20, v{HR}, v20, s[30:31]')
    a(f'v_cndmask_b32 v21, v{HI}, v21, s[30:31]')
    a('v_lshrrev_b32 v5, 5, v2')
    a('v_mul_u32_u24 v5, 448, v5')
    a('v_add_u32 v5, v5, v4')
    a('v_lshlrev_b32 v5, 3, v5')
    a('s_mul_i32 s29, s25, 7168')
    a(f's_add_u32 s29, s29, {WS_EE}')
    a('buffer_store_dwordx2 v[20:21], v5, s[12:15], s29 offen')
    a.label('K1_END')
    a('s_endpgm')
    return name, 168
```

```python
from common import *
import struct
def f2u(x): return struct.unpack('<I', struct.pack('<f', x))[0]
NATT = 256
NSCAN = 112

def set_standin(a, Q1, M, t0, t1, t2):
    a(f'v_cvt_pk_bf16_f32 v{t0}, -v{M}, -v{M}')
    a(f'v_and_b32 v{t0}, 0xffff0000, v{t0}')
    a(f'v_sub_f32 v{t1}, -v{M}, v{t0}')
    a(f'v_cvt_pk_bf16_f32 v{t1}, v{t1}, v{t1}')
    a(f'v_and_b32 v{t1}, 0xffff0000, v{t1}')
    a(f'v_add_f32 v{M}, v{t0}, v{t1}')
    a(f'v_sub_f32 v{M}, 0, v{M}')
    a(f'v_lshrrev_b32 v{t2}, 16, v{t0}')
    a(f'v_or_b32 v{t2}, v{t2}, v{t1}')
    a(f'v_cndmask_b32 v{Q1+2}, v{Q1+2}, v{t2}, s[30:31]')

def colmax(a, S, M, t0):
    a(f'v_max3_f32 v{M}, v{S}, v{S+1}, v{S+2}')
    for r in range(3, 15, 2):
        a(f'v_max3_f32 v{M}, v{M}, v{S+r}, v{S+r+1}')
    a(f'v_max_f32 v{M}, v{M}, v{S+15}')
    xhalf_max(a, M, t0)

def xhalf_max(a, M, t0):
    a(f'v_mov_b32 v{t0}, v{M}')
    a('s_nop 1')
    a(f'v_permlane32_swap_b32 v{M}, v{t0}')
    a('s_nop 1')
    a(f'v_max_f32 v{M}, v{M}, v{t0}')

def gen_k2(a):
    name = 'k2_attn_kernel'
    kernel_header(a, name)
    a(f's_cmp_ge_u32 s2, {NATT+NSCAN}')
    a('s_cbranch_scc1 K2_END')
    a('s_load_dwordx2 s[40:41], s[0:1], 112')
    a('v_lshrrev_b32 v1, 6, v0')
    a('v_and_b32 v2, 63, v0')
    a('s_nop 0')
    a('v_readfirstlane_b32 s3, v1')
    a('s_mov_b32 s30, 0')
    a('s_mov_b32 s31, -1')
    a(f's_cmp_ge_u32 s2, {NATT}')
    a('s_cbranch_scc1 K2_SCAN')
    a('s_setprio 2')
    a('s_and_b32 s20, s2, 7')
    a('s_lshl_b32 s20, s20, 1')
    a('s_bfe_u32 s21, s2, 0x10003')
    a('s_add_u32 s20, s20, s21')
    a('s_lshr_b32 s21, s2, 4')
    a('s_and_b32 s22, s3, 3')
    a('s_lshr_b32 s23, s3, 2')
    a('v_lshlrev_b32 v4, 4, v2')
    a('s_lshl_b32 s24, s23, 13')
    a('v_add_u32 v5, s24, v4')
    a('s_lshl_b32 s25, s20, 6')
    a('s_lshl_b32 s26, s21, 2')
    a('s_add_u32 s26, s26, s22')
    a('s_add_u32 s27, s25, s26')
    a('s_lshl_b32 s27, s27, 11')
    a('s_lshl_b32 s28, s23, 5')
    a('s_add_u32 s28, s28, s25')
    a('s_lshl_b32 s28, s28, 11')
    a(f's_add_u32 s33, s28, {WS_KF}')
    a(f's_add_u32 s34, s28, {WS_VF}')
    a('s_cmp_lt_u32 s22, 2')
    a('s_cselect_b32 s28, s33, s34')
    a('s_and_b32 s29, s22, 1')
    a('s_lshl_b32 s29, s29, 11')
    a('s_add_u32 s28, s28, s29')
    a('s_lshl_b32 s29, s22, 11')
    a('s_add_u32 s29, s29, s24')
    O, S0, S1, P, Q, KB, VB, M = 16, 32, 48, 64, 72, 80, 96, 6
    a('s_waitcnt lgkmcnt(0)')
    srd(a, 4, ptr=40, size=WS_END)
    a(f'buffer_load_dwordx4 {vr(Q,4)}, v4, s[4:7], s27 offen')
    a(f'buffer_load_dwordx4 {vr(Q+4,4)}, v4, s[4:7], s27 offen offset:1024')
    def dma(slot):
        a(f's_add_u32 m0, s29, {slot*16384}')
        a('s_nop 0')
        a('buffer_load_dwordx4 v4, s[4:7], s28 offen lds')
        a('buffer_load_dwordx4 v4, s[4:7], s28 offen offset:1024 lds')
        a('s_add_u32 s28, s28, 4096')
    for s in range(3): dma(s)
    for r in range(16): a(f'v_mov_b32 v{O+r}, 0')
    def rdK(tile, buf):
        off = ((tile >> 1) & 3) * 16384 + (tile & 1) * 2048
        a(f'ds_read_b128 {vr(KB+buf*8,4)}, v5 offset:{off}')
        a(f'ds_read_b128 {vr(KB+buf*8+4,4)}, v5 offset:{off+1024}')
    def rdV(tile, buf):
        off = ((tile >> 1) & 3) * 16384 + 4096 + (tile & 1) * 2048
        a(f'ds_read_b128 {vr(VB+buf*8,4)}, v5 offset:{off}')
        a(f'ds_read_b128 {vr(VB+buf*8+4,4)}, v5 offset:{off+1024}')
    def qk(S, kb, which):
        if which == 0: a(f'v_mfma_f32_32x32x16_bf16 {vr(S,16)}, {vr(kb,4)}, {vr(Q,4)}, 0')
        else:          a(f'v_mfma_f32_32x32x16_bf16 {vr(S,16)}, {vr(kb+4,4)}, {vr(Q+4,4)}, {vr(S,16)}')
    a('s_waitcnt vmcnt(4)')
    a('s_barrier')
    rdK(0, 0); rdK(1, 1); rdV(0, 0)
    a('s_waitcnt lgkmcnt(4)')
    qk(S0, KB, 0); qk(S0, KB, 1)
    a('s_nop 7'); a('s_nop 3')
    colmax(a, S0, M, 7)
    set_standin(a, Q+4, M, 7, 8, 9)
    a('s_nop 1')
    qk(S0, KB, 0); qk(S0, KB, 1)
    a('s_mov_b32 s35, 4')
    a.label('K2_LOOP')
    for t in range(8):
        Sc = S0 if t % 2 == 0 else S1
        Sn = S1 if t % 2 == 0 else S0
        kn = KB + ((t+1) & 1) * 8
        vc = VB + (t & 1) * 8
        if t % 2 == 0:
            a('s_waitcnt vmcnt(2) lgkmcnt(0)')
            a('s_barrier')
            dma(((t >> 1) + 3) & 3)
        else:
            a('s_waitcnt lgkmcnt(0)')
        qk(Sn, kn, 0)
        rdK(t+2, t & 1)
        rdV(t+1, (t+1) & 1)
        for r in range(8): a(f'v_exp_f32 v{Sc+r}, v{Sc+r}')
        qk(Sn, kn, 1)
        for j in range(4): a(f'v_cvt_pk_bf16_f32 v{P+j}, v{Sc+2*j}, v{Sc+2*j+1}')
        for r in range(8, 16): a(f'v_exp_f32 v{Sc+r}, v{Sc+r}')
        a(f'v_mfma_f32_32x32x16_bf16 {vr(O,16)}, {vr(vc,4)}, {vr(P,4)}, {vr(O,16)}')
        for j in range(4, 8): a(f'v_cvt_pk_bf16_f32 v{P+j}, v{Sc+2*j}, v{Sc+2*j+1}')
        a('s_nop 1')
        a(f'v_mfma_f32_32x32x16_bf16 {vr(O,16)}, {vr(vc+4,4)}, {vr(P+4,4)}, {vr(O,16)}')
    a('s_sub_u32 s35, s35, 1')
    a('s_cmp_lg_u32 s35, 0')
    a('s_cbranch_scc1 K2_LOOP')
    a('s_nop 7'); a('s_nop 3')
    a(f'v_mov_b32 v7, 0x4e800000')
    a(f'v_cmp_nlt_f32 vcc, v{O+12}, v7')
    a('s_nop 1')
    a('s_and_b64 vcc, vcc, s[30:31]')
    a('s_cbranch_vccz K2_MERGE')
    a(f'v_mov_b32 v8, 0xff800000')
    a('s_mov_b32 s35, 32')
    a('s_mov_b32 s36, s33')
    a.label('K2_FB1')
    a(f'buffer_load_dwordx4 {vr(KB,4)}, v4, s[4:7], s36 offen')
    a(f'buffer_load_dwordx4 {vr(KB+4,4)}, v4, s[4:7], s36 offen offset:1024')
    a('s_waitcnt vmcnt(0)')
    qk(S0, KB, 0); qk(S0, KB, 1)
    a('s_nop 7'); a('s_nop 3')
    for r in range(0, 16, 2):
        a(f'v_max3_f32 v8, v8, v{S0+r}, v{S0+r+1}')
    a('s_add_u32 s36, s36, 2048')
    a('s_sub_u32 s35, s35, 1')
    a('s_cmp_lg_u32 s35, 0')
    a('s_cbranch_scc1 K2_FB1')
    xhalf_max(a, 8, 7)
    a(f'v_add_f32 v{M}, v{M}, v8')
    set_standin(a, Q+4, M, 7, 8, 9)
    for r in range(16): a(f'v_mov_b32 v{O+r}, 0')
    a('s_mov_b32 s35, 32')
    a('s_mov_b32 s36, s33')
    a('s_mov_b32 s37, s34')
    a.label('K2_FB2')
    a(f'buffer_load_dwordx4 {vr(KB,4)}, v4, s[4:7], s36 offen')
    a(f'buffer_load_dwordx4 {vr(KB+4,4)}, v4, s[4:7], s36 offen offset:1024')
    a(f'buffer_load_dwordx4 {vr(VB,4)}, v4, s[4:7], s37 offen')
    a(f'buffer_load_dwordx4 {vr(VB+4,4)}, v4, s[4:7], s37 offen offset:1024')
    a('s_waitcnt vmcnt(0)')
    qk(S0, KB, 0); qk(S0, KB, 1)
    a('s_nop 7'); a('s_nop 3')
    for r in range(16): a(f'v_exp_f32 v{S0+r}, v{S0+r}')
    a('s_nop 1')
    for j in range(8): a(f'v_cvt_pk_bf16_f32 v{P+j}, v{S0+2*j}, v{S0+2*j+1}')
    a('s_nop 1')
    a(f'v_mfma_f32_32x32x16_bf16 {vr(O,16)}, {vr(VB,4)}, {vr(P,4)}, {vr(O,16)}')
    a(f'v_mfma_f32_32x32x16_bf16 {vr(O,16)}, {vr(VB+4,4)}, {vr(P+4,4)}, {vr(O,16)}')
    a('s_add_u32 s36, s36, 2048')
    a('s_add_u32 s37, s37, 2048')
    a('s_sub_u32 s35, s35, 1')
    a('s_cmp_lg_u32 s35, 0')
    a('s_cbranch_scc1 K2_FB2')
    a('s_nop 7'); a('s_nop 3')
    a.label('K2_MERGE')
    a('s_waitcnt vmcnt(0) lgkmcnt(0)')
    a('s_barrier')
    a('s_mul_i32 s36, s22, 5120')
    a('v_add_u32 v8, s36, v4')
    a('v_lshlrev_b32 v9, 2, v2')
    a('v_add_u32 v9, s36, v9')
    a('s_cmp_eq_u32 s23, 0')
    a('s_cbranch_scc1 K2_M0')
    for q in range(4):
        a(f'ds_write_b128 v8, {vr(O+4*q,4)} offset:{q*1024}')
    a(f'ds_write_b32 v9, v{M} offset:4096')
    a('s_waitcnt lgkmcnt(0)')
    a('s_barrier')
    a('s_endpgm')
    a.label('K2_M0')
    a('s_barrier')
    for q in range(4):
        a(f'ds_read_b128 {vr(S0+4*q,4)}, v8 offset:{q*1024}')
    a(f'ds_read_b32 v10, v9 offset:4096')
    a('s_waitcnt lgkmcnt(0)')
    a(f'v_max_f32 v11, v{M}, v10')
    a(f'v_sub_f32 v12, v{M}, v11')
    a(f'v_sub_f32 v13, v10, v11')
    a('v_exp_f32 v12, v12')
    a('v_exp_f32 v13, v13')
    a('s_nop 1')
    a(f'v_mul_f32 v14, v12, v{O+12}')
    a(f'v_fmac_f32 v14, v13, v{S0+12}')
    a('v_mov_b32 v15, v14')
    a('s_nop 1')
    a('v_permlane32_swap_b32 v15, v14')
    a('s_nop 1')
    a('v_rcp_f32 v14, v14')
    a('s_nop 1')
    a('v_mul_f32 v12, v12, v14')
    a('v_mul_f32 v13, v13, v14')
    for r in range(16):
        a(f'v_mul_f32 v{O+r}, v12, v{O+r}')
        a(f'v_fmac_f32 v{O+r}, v13, v{S0+r}')
    for j in range(8): a(f'v_cvt_pk_bf16_f32 v{P+j}, v{O+2*j}, v{O+2*j+1}')
    a('v_mov_b32 v7, 0')
    a(f'v_cndmask_b32 v{P+6}, v{P+6}, v7, s[30:31]')
    a(f'v_cndmask_b32 v{P+7}, v{P+7}, v7, s[30:31]')
    a('s_lshl_b32 s36, s26, 4')
    a('s_add_u32 s36, s36, s20')
    a('s_lshl_b32 s36, s36, 11')
    a(f's_add_u32 s36, s36, {WS_OF}')
    a(f'buffer_store_dwordx4 {vr(P,4)}, v4, s[4:7], s36 offen')
    a(f'buffer_store_dwordx4 {vr(P+4,4)}, v4, s[4:7], s36 offen offset:1024')
    a('s_endpgm')
    a.label('K2_SCAN')
    a('s_cmp_ge_u32 s3, 4')
    a('s_cbranch_scc1 K2_END')
    a('s_load_dwordx4 s[48:51], s[0:1], 8')
    a('s_load_dwordx2 s[52:53], s[0:1], 56')
    a(f's_sub_u32 s19, s2, {NATT}')
    a('s_and_b32 s20, s19, 7')
    a('s_lshl_b32 s20, s20, 2')
    a('s_add_u32 s20, s20, s3')
    a('s_lshr_b32 s21, s19, 3')
    a('s_mul_i32 s26, s20, 14')
    a('s_add_u32 s26, s26, s21')
    a('s_lshl_b32 s26, s26, 14')
    a(f's_add_u32 s26, s26, {WS_BU}')
    a('v_lshlrev_b32 v10, 4, v2')
    a('s_lshl_b32 s25, s21, 5')
    a('v_and_b32 v4, 31, v2')
    a('v_add_u32 v4, s25, v4')
    a('v_lshlrev_b32 v5, 1, v4')
    a('v_lshrrev_b32 v3, 5, v2')
    BU, EE = 32, 96
    a('s_waitcnt lgkmcnt(0)')
    srd(a, 4, ptr=40, size=WS_END)
    srd(a, 8, ptr=40, size=32*7168, add=WS_EE)
    srd(a, 56, ptr=48, size=896)
    srd(a, 60, ptr=50, size=896)
    srd(a, 64, ptr=52, size=896)
    a('s_sub_u32 s24, s20, 1')
    a('v_sub_u32 v11, s24, v3')
    a('s_movk_i32 s23, 7168')
    a('v_mul_lo_u32 v11, v11, s23')
    a('v_lshl_add_u32 v11, v4, 3, v11')
    a('v_add_u32 v11, 3584, v11')
    for i in range(16):
        a(f'buffer_load_dwordx2 {vr(EE+2*i,2)}, v11, s[8:11], 0 offen')
        if i < 15: a(f'v_subrev_u32 v11, 14336, v11')
    a('s_mul_i32 s24, s20, 7168')
    a('v_lshlrev_b32 v12, 3, v4')
    a('buffer_load_dwordx2 v[14:15], v12, s[8:11], s24 offen')
    for part in range(2):
        for q in range(8):
            a(f's_add_u32 s29, s26, {part*8192 + (q//4)*4096}')
            a(f'buffer_load_dwordx4 {vr(BU+part*32+q*4,4)}, v10, s[4:7], s29 offen offset:{(q%4)*1024}')
    LR, LI = 6, 7
    lam_params(a, 5, 16, 56, LR, LI)
    a(f'v_mov_b32 v8, v{LR}')
    a(f'v_mov_b32 v9, v{LI}')
    for k in range(5): csq(a, 8, 9, 8, 9, 16)
    csq(a, 12, 13, 8, 9, 16)
    csq(a, 24, 25, 12, 13, 16)
    a(f'v_mov_b32 v26, v{EE+30}')
    a(f'v_mov_b32 v27, v{EE+31}')
    for i in range(14, -1, -1):
        a(f'v_fma_f32 v16, v24, v26, v{EE+2*i}')
        a(f'v_fma_f32 v17, v24, v27, v{EE+2*i+1}')
        a(f'v_fma_f32 v16, -v25, v27, v16')
        a(f'v_fma_f32 v27, v25, v26, v17')
        a(f'v_mov_b32 v26, v16')
    a('v_mov_b32 v16, v26')
    a('v_mov_b32 v17, v27')
    a('s_nop 1')
    a('v_permlane32_swap_b32 v26, v16')
    a('v_permlane32_swap_b32 v27, v17')
    a('s_nop 1')
    a('v_fma_f32 v26, v12, v16, v26')
    a('v_fma_f32 v27, v12, v17, v27')
    a('v_fma_f32 v26, -v13, v17, v26')
    a('v_fma_f32 v27, v13, v16, v27')
    a('v_fma_f32 v16, v8, v26, v14')
    a('v_fma_f32 v17, v8, v27, v15')
    a('v_fma_f32 v16, -v9, v27, v16')
    a('v_fma_f32 v17, v9, v26, v17')
    a('v_cndmask_b32 v26, v26, v16, s[30:31]')
    a('v_cndmask_b32 v27, v27, v17, s[30:31]')
    R, I = BU, BU + 32
    pr, pi = 26, 27
    for t in range(32):
        a(f'v_fma_f32 v{R+t}, v{LR}, v{pr}, v{R+t}')
        a(f'v_fma_f32 v{I+t}, v{LR}, v{pi}, v{I+t}')
        a(f'v_fma_f32 v{R+t}, -v{LI}, v{pi}, v{R+t}')
        a(f'v_fma_f32 v{I+t}, v{LI}, v{pr}, v{I+t}')
        pr, pi = R+t, I+t
    a('s_mul_i32 s24, s3, 6144')
    a('v_and_b32 v8, 31, v2')
    a('v_mul_u32_u24 v8, 192, v8')
    a('v_lshl_add_u32 v8, v3, 6, v8')
    a('v_add_u32 v8, s24, v8')
    a('v_lshlrev_b32 v9, 3, v3')
    a('v_bfe_u32 v12, v2, 2, 2')
    a('v_add_u32 v9, v9, v12')
    a('v_mul_u32_u24 v9, 192, v9')
    a('v_bfe_u32 v12, v2, 4, 1')
    a('v_lshl_add_u32 v9, v12, 5, v9')
    a('v_and_b32 v12, 3, v2')
    a('v_lshl_add_u32 v9, v12, 3, v9')
    a('v_add_u32 v9, s24, v9')
    a('s_mul_i32 s27, s20, 112')
    a('s_lshl_b32 s28, s21, 1')
    a('s_add_u32 s27, s27, s28')
    a('s_lshl_b32 s27, s27, 10')
    a(f's_add_u32 s27, s27, {WS_HF}')
    PK, FR = 96, 112
    for part in range(2):
        B = BU + part*32
        ng = '-' if part else ''
        for j in range(16):
            a(f'v_cvt_pk_bf16_f32 v{PK+j}, {ng}v{B+2*j}, {ng}v{B+2*j+1}')
        if part: a('s_waitcnt lgkmcnt(0)')
        for q in range(4):
            a(f'ds_write_b128 v8, {vr(PK+q*4,4)} offset:{q*16}')
        a('s_waitcnt lgkmcnt(0)')
        if part: a('s_nop 0')
        F = FR if part == 0 else BU
        for hp in range(2):
            for e in range(2):
                for sec in range(2):
                    a(f'ds_read_b64_tr_b16 {vr(F+(hp*2+e)*4+sec*2,2)}, v9 offset:{(16*e+4*sec)*192 + hp*64}')
        a('s_waitcnt lgkmcnt(0)')
        for hp in range(2):
            for e in range(2):
                a(f's_add_u32 s29, s27, {(hp*56 + part*28 + e)*1024}')
                a(f'buffer_store_dwordx4 {vr(F+(hp*2+e)*4,4)}, v10, s[4:7], s29 offen')
    a.label('K2_END')
    a('s_endpgm')
    return name, 128
```

```python
from common import *
from k1 import xtype_read_addrs

def gen_k3(a):
    name = 'k3_out_kernel'
    kernel_header(a, name)
    a('s_cmp_ge_u32 s2, 224')
    a('s_cbranch_scc1 K3_END')
    a('s_load_dwordx2 s[40:41], s[0:1], 112')
    a('s_load_dwordx2 s[42:43], s[0:1], 96')
    a('v_lshrrev_b32 v1, 6, v0')
    a('v_and_b32 v2, 63, v0')
    a('s_nop 0')
    a('v_readfirstlane_b32 s3, v1')
    a('s_cmp_ge_u32 s2, 112')
    a('s_cselect_b32 s19, 112, 0')
    a('s_sub_u32 s19, s2, s19')
    a('s_and_b32 s20, s19, 7')
    a('s_lshl_b32 s20, s20, 1')
    a('s_bfe_u32 s21, s19, 0x10003')
    a('s_add_u32 s20, s20, s21')
    a('s_lshr_b32 s21, s19, 4')
    a('s_lshl_b32 s22, s20, 2')
    a('s_add_u32 s22, s22, s3')
    a('v_lshlrev_b32 v4, 4, v2')
    a('s_lshl_b32 s24, s22, 5')
    a('v_and_b32 v5, 31, v2')
    a('v_add_u32 v5, s24, v5')
    a('v_lshrrev_b32 v3, 5, v2')
    a('v_mul_u32_u24 v6, 3584, v5')
    a('v_lshl_add_u32 v6, v3, 4, v6')
    a('s_lshl_b32 s24, s21, 8')
    a('v_add_u32 v6, s24, v6')
    ACC = 32; ACT = 64; WF = 192
    for r in range(32): a(f'v_mov_b32 v{ACC+r}, 0')
    a('s_cmp_ge_u32 s2, 112')
    a('s_cbranch_scc1 K3_B')
    a('s_load_dwordx4 s[44:47], s[0:1], 40')
    a('s_load_dwordx2 s[48:49], s[0:1], 0')
    a('s_load_dwordx2 s[50:51], s[0:1], 64')
    a('s_lshl_b32 s24, s21, 6')
    a('s_lshl_b32 s25, s3, 4')
    a('s_add_u32 s24, s24, s25')
    a('v_lshrrev_b32 v8, 3, v2')
    a('v_add_u32 v8, s24, v8')
    a('v_mul_u32_u24 v8, 896, v8')
    a('v_and_b32 v9, 7, v2')
    a('v_lshrrev_b32 v10, 4, v2')
    a('v_xor_b32 v9, v9, v10')
    a('v_xor_b32 v10, 4, v9')
    a('v_lshl_add_u32 v12, v9, 4, v8')
    a('v_lshl_add_u32 v13, v10, 4, v8')
    a('v_add_u32 v13, 7168, v13')
    xtype_read_addrs(a, 16, 2, 8, 9)
    for s in range(4): a(f'v_add_u32 v{20+s}, 57344, v{16+s}')
    a('v_mul_u32_u24 v24, 896, v5')
    a('v_lshl_add_u32 v24, v3, 3, v24')
    a('s_lshl_b32 s24, s21, 7')
    a('v_add_u32 v24, s24, v24')
    a('v_lshlrev_b32 v25, 3, v3')
    a('v_add_u32 v25, s24, v25')
    a('s_waitcnt lgkmcnt(0)')
    srd(a, 4, ptr=40, size=WS_END)
    srd(a, 8, ptr=44, size=448*896)
    srd(a, 12, ptr=46, size=448*896)
    srd(a, 16, ptr=42, size=2048*3584)
    srd(a, 52, ptr=48, size=2048*896)
    srd(a, 56, ptr=50, size=896)
    a('s_mul_i32 s26, s22, 57344')
    a(f's_add_u32 s26, s26, {WS_HF}')
    a('s_lshl_b32 s27, s3, 11')
    def dma(st):
        srdn = 8 if st < 7 else 12
        for j in range(2):
            a(f's_add_u32 m0, s27, {st*8192 + j*1024}')
            a(f's_movk_i32 s29, {128*(st % 7)}')
            a(f'buffer_load_dwordx4 v{12+j}, s[{srdn}:{srdn+3}], s29 offen lds')
    def act(st):
        a(f's_add_u32 s29, s26, {st*4096}')
        for k in range(4):
            a(f'buffer_load_dwordx4 {vr(ACT+((st%7)*4+k)*4,4)}, v4, s[4:7], s29 offen offset:{k*1024}')
    for st in range(7):
        dma(st); act(st)
    for st in range(7, 14): dma(st)
    def rd(t):
        st, s = t // 4, t % 4
        base = (16 if st < 7 else 20) + s
        for ct in range(2):
            a(f'ds_read_b128 {vr(WF+(t&1)*8+ct*4,4)}, v{base} offset:{(st%7)*8192 + ct*4096}')
    XR = 208; DR = 224
    for t in range(56):
        st, s = t // 4, t % 4
        if s == 0:
            if st < 7:
                a(f's_waitcnt vmcnt({50-2*st})')
                a('s_barrier')
                rd(t)
            else:
                a(f's_waitcnt vmcnt({(13-st)*4+16})')
                if st == 7:
                    a('s_barrier')
                    rd(t)
        nxt = t + 1
        pre = nxt < 56 and not (nxt % 4 == 0 and nxt // 4 <= 7)
        if pre:
            rd(nxt)
            a('s_waitcnt lgkmcnt(2)')
        else:
            a('s_waitcnt lgkmcnt(0)')
        for ct in range(2):
            c = vr(ACC+ct*16, 16)
            a(f'v_mfma_f32_32x32x16_bf16 {c}, {vr(WF+(t&1)*8+ct*4,4)}, {vr(ACT+((st%7)*4+s)*4,4)}, {c}')
        if s == 3 and st < 7:
            act(st + 7)
            if st == 6:
                for ct in range(2):
                    for g in range(4):
                        a(f'buffer_load_dwordx2 {vr(XR+(ct*4+g)*2,2)}, v24, s[52:55], 0 offen offset:{ct*64+g*16}')
                        a(f'buffer_load_dwordx2 {vr(DR+(ct*4+g)*2,2)}, v25, s[56:59], 0 offen offset:{ct*64+g*16}')
    a('s_waitcnt vmcnt(0)')
    a('s_nop 7')
    for ct in range(2):
        for g in range(4):
            x = XR+(ct*4+g)*2; d = DR+(ct*4+g)*2; c = ACC+ct*16+g*4
            for e in range(4):
                if e % 2 == 0:
                    a(f'v_lshlrev_b32 v8, 16, v{x+e//2}')
                    a(f'v_lshlrev_b32 v9, 16, v{d+e//2}')
                else:
                    a(f'v_and_b32 v8, 0xffff0000, v{x+e//2}')
                    a(f'v_and_b32 v9, 0xffff0000, v{d+e//2}')
                a('v_mul_f32 v8, v8, v9')
                a(f'v_fma_f32 v{c+e}, 2.0, v{c+e}, v8')
            a(f'buffer_store_dwordx4 {vr(c,4)}, v6, s[16:19], 0 offen offset:{ct*128+g*32}')
    a('s_endpgm')
    a.label('K3_B')
    a('s_load_dwordx2 s[44:45], s[0:1], 88')
    a('s_mul_i32 s24, s3, 120')
    a('v_lshrrev_b32 v8, 3, v2')
    a('v_add_u32 v8, s24, v8')
    a('v_mul_u32_u24 v8, 896, v8')
    a('v_bfe_u32 v9, v2, 4, 1')
    a('v_lshlrev_b32 v9, 2, v9')
    a('v_and_b32 v10, 7, v2')
    a('v_xor_b32 v9, v9, v10')
    a('v_lshl_add_u32 v12, v9, 4, v8')
    a('s_lshl_b32 s24, s21, 7')
    a('v_add_u32 v12, s24, v12')
    a('v_lshlrev_b32 v8, 2, v3')
    a('v_bfe_u32 v9, v2, 2, 2')
    a('v_add_u32 v8, v8, v9')
    a('v_lshlrev_b32 v8, 7, v8')
    a('v_bfe_u32 v9, v2, 4, 1')
    a('v_lshl_add_u32 v8, v9, 5, v8')
    a('v_and_b32 v9, 3, v2')
    a('v_lshl_add_u32 v8, v9, 3, v8')
    a('v_bfe_u32 v9, v2, 3, 1')
    a('v_lshl_add_u32 v16, v9, 6, v8')
    a('v_xor_b32 v17, 64, v16')
    a('v_add_u32 v6, 1792, v6')
    a('s_waitcnt lgkmcnt(0)')
    srd(a, 4, ptr=40, size=WS_END)
    srd(a, 8, ptr=44, size=448*896)
    srd(a, 16, ptr=42, size=2048*3584)
    a('s_mul_i32 s27, s3, 15360')
    for j in range(15):
        a(f's_add_u32 m0, s27, {j*1024}')
        a(f's_movk_i32 s29, 0')
        a(f'buffer_load_dwordx4 v12, s[8:11], 0 offen lds')
        if j < 14: a('v_add_u32 v12, 7168, v12')
    a('s_lshl_b32 s26, s22, 15')
    a(f's_add_u32 s26, s26, {WS_OF}')
    for u in range(32):
        if u % 4 == 0: a(f's_add_u32 s29, s26, {u*1024}')
        a(f'buffer_load_dwordx4 {vr(ACT+u*4,4)}, v4, s[4:7], s29 offen offset:{(u%4)*1024}')
    a('s_waitcnt vmcnt(32)')
    a('s_barrier')
    def rd2(u):
        h, s = u // 2, u % 2
        for ct in range(2):
            for sec in range(2):
                a(f'ds_read_b64_tr_b16 {vr(WF+(u&1)*8+ct*4+sec*2,2)}, v{16+ct} offset:{(28*h+16*s+8*sec)*128}')
    rd2(0)
    for u in range(32):
        if u < 31:
            rd2(u+1)
            a(f's_waitcnt vmcnt({31-u}) lgkmcnt(4)')
        else:
            a('s_waitcnt vmcnt(0) lgkmcnt(0)')
        for ct in range(2):
            c = vr(ACC+ct*16, 16)
            a(f'v_mfma_f32_32x32x16_bf16 {c}, {vr(WF+(u&1)*8+ct*4,4)}, {vr(ACT+u*4,4)}, {c}')
    a('s_nop 7'); a('s_nop 3')
    for ct in range(2):
        for g in range(4):
            a(f'buffer_store_dwordx4 {vr(ACC+ct*16+g*4,4)}, v6, s[16:19], 0 offen offset:{ct*128+g*32}')
    a.label('K3_END')
    a('s_endpgm')
    return name, 240
```

```python
import sys, os
sys.path.insert(0, os.path.dirname(__file__))
from common import *
from k1 import gen_k1
from k2 import gen_k2, NATT, NSCAN
from k3 import gen_k3
ref = open('concat_heads__ssm_conv_s5__mha_block__prompt.s.ref').read().split('\n')
hdr = []
for ln in ref:
    if ln.startswith('; @launch'):
        hdr.append('; @launch kernel=k1_proj_kernel grid=(240,1,1) block=(256,1,1) lds=122880')
        hdr.append(f'; @launch kernel=k2_attn_kernel grid=({NATT+NSCAN},1,1) block=(512,1,1) lds=65536')
        hdr.append('; @launch kernel=k3_out_kernel grid=(224,1,1) block=(256,1,1) lds=114688')
        break
    hdr.append(ln)
a = Asm()
ks = [gen_k1(a), gen_k2(a), gen_k3(a)]
out = '\n'.join(hdr) + '\n.amdgcn_target "amdgcn-amd-amdhsa--gfx950"\n.text\n' + a.text()
out += '.section .rodata,"a"\n' + ''.join(kernel_desc(n, v) for n, v in ks)
dst = sys.argv[1] if len(sys.argv) > 1 else 'concat_heads__ssm_conv_s5__mha_block__prompt.s'
open(dst, 'w').write(out)
print('wrote', dst, len(out))
```

```python
class Asm:
    def __init__(self):
        self.lines = []
    def __call__(self, s):
        for ln in s.strip('\n').split('\n'):
            self.lines.append('    ' + ln.strip())
    def label(self, l):
        self.lines.append(l + ':')
    def raw(self, s):
        self.lines.append(s)
    def text(self):
        return '\n'.join(self.lines) + '\n'

def vr(b, n=1):
    return f'v{b}' if n == 1 else f'v[{b}:{b+n-1}]'
def sr(b, n=1):
    return f's{b}' if n == 1 else f's[{b}:{b+n-1}]'

KA = dict(A_x=0, Lre=8, Lim=16, Bre=24, Bim=32, Cre=40, Cim=48, logdt=56, Dskip=64,
          B_x=72, wqkv=80, wo=88, out=96, dbg=104, ws=112)
WS_QF = 0x000000
WS_KF = 0x200000
WS_VF = 0x400000
WS_BU = 0x600000
WS_EE = 0xD00000
WS_HF = 0xD40000
WS_OF = 0x10C0000
WS_END = 0x12C0000

def srd(a, sbase, karg_off=None, size=None, ptr=None, add=0):
    if add:
        a(f's_add_u32 s{sbase}, s{ptr}, {add}')
        a(f's_addc_u32 s{sbase+1}, s{ptr+1}, 0')
        a(f's_and_b32 s{sbase+1}, s{sbase+1}, 0xffff')
    else:
        a(f's_mov_b32 s{sbase}, s{ptr}')
        a(f's_and_b32 s{sbase+1}, s{ptr+1}, 0xffff')
    a(f's_mov_b32 s{sbase+2}, {size}')
    a(f's_mov_b32 s{sbase+3}, 0x00020000')

def kernel_header(a, name):
    a.raw(f'.globl {name}')
    a.raw('.p2align 8')
    a.raw(f'.type {name},@function')
    a.label(name)

def kernel_desc(name, vgpr, sgpr=102, accum=None):
    accum = accum if accum is not None else (vgpr + 3) // 4 * 4
    return f""".p2align 6
.amdhsa_kernel {name}
  .amdhsa_next_free_vgpr {vgpr}
  .amdhsa_next_free_sgpr {sgpr}
  .amdhsa_accum_offset {accum}
  .amdhsa_group_segment_fixed_size 0
  .amdhsa_kernarg_size 120
  .amdhsa_user_sgpr_count 2
  .amdhsa_user_sgpr_kernarg_segment_ptr 1
  .amdhsa_system_sgpr_workgroup_id_x 1
.end_amdhsa_kernel
"""

def lam_params(a, vp2, T, sL, out_lre, out_lim, coef=None, phase=0):
    t0,t1,t2,t3,t4,t5,t6,t7 = [T+i for i in range(8)]
    if phase in (0, 1):
      a(f'buffer_load_ushort v{t0}, v{vp2}, s[{sL}:{sL+3}], 0 offen')
      a(f'buffer_load_ushort v{t1}, v{vp2}, s[{sL+4}:{sL+7}], 0 offen')
      a(f'buffer_load_ushort v{t2}, v{vp2}, s[{sL+8}:{sL+11}], 0 offen')
    if phase == 1: return
    if phase == 0: a('s_waitcnt vmcnt(0)')
    a(f'v_lshlrev_b32 v{t0}, 16, v{t0}')
    a(f'v_lshlrev_b32 v{t1}, 16, v{t1}')
    a(f'v_lshlrev_b32 v{t2}, 16, v{t2}')
    a(f'v_mul_f32 v{t2}, 0x3fb8aa3b, v{t2}')
    a(f'v_exp_f32 v{t2}, v{t2}')
    a('s_nop 1')
    a(f'v_cvt_pk_bf16_f32 v{t2}, v{t2}, v{t2}')
    a(f'v_and_b32 v{t2}, 0xffff0000, v{t2}')
    a(f'v_mul_f32 v{t3}, v{t2}, v{t0}')
    a(f'v_mul_f32 v{t4}, v{t2}, v{t1}')
    a(f'v_mul_f32 v{t3}, 0x3fb8aa3b, v{t3}')
    a(f'v_exp_f32 v{t3}, v{t3}')
    a(f'v_mul_f32 v{t4}, 0.15915494, v{t4}')
    a(f'v_fract_f32 v{t4}, v{t4}')
    a(f'v_sin_f32 v{t5}, v{t4}')
    a(f'v_cos_f32 v{t6}, v{t4}')
    a('s_nop 1')
    a(f'v_mul_f32 v{out_lre}, v{t3}, v{t6}')
    a(f'v_mul_f32 v{out_lim}, v{t3}, v{t5}')
    if coef:
        cr, ci = coef
        a(f'v_add_f32 v{t3}, -1.0, v{out_lre}')
        a(f'v_mul_f32 v{t4}, v{t0}, v{t0}')
        a(f'v_fmac_f32 v{t4}, v{t1}, v{t1}')
        a(f'v_rcp_f32 v{t4}, v{t4}')
        a(f'v_mul_f32 v{t5}, v{t3}, v{t0}')
        a(f'v_fmac_f32 v{t5}, v{out_lim}, v{t1}')
        a(f'v_mul_f32 v{t6}, v{out_lim}, v{t0}')
        a(f'v_fma_f32 v{t6}, -v{t3}, v{t1}, v{t6}')
        a(f'v_mul_f32 v{cr}, v{t5}, v{t4}')
        a(f'v_mul_f32 v{ci}, v{t6}, v{t4}')

def csq(a, dr, di, sr_, si, t):
    a(f'v_mul_f32 v{t}, v{si}, v{si}')
    a(f'v_mul_f32 v{di}, v{sr_}, v{si}') if di != si else a(f'v_mul_f32 v{di}, v{sr_}, v{si}')
    a(f'v_fma_f32 v{dr}, v{sr_}, v{sr_}, -v{t}')
    a(f'v_add_f32 v{di}, v{di}, v{di}')

import os
STAMPS = os.environ.get('STAMPS', '') != ''
_lbl = [0]
def stamp(a, i, real=False):
    if not STAMPS: return
    a(f's_mem{"real" if real else ""}time s[{70+2*i}:{71+2*i}]')
    a('s_waitcnt lgkmcnt(0)')
def stamp_flush(a, wg, n, slot, wave=0):
    if not STAMPS: return
    _lbl[0] += 1
    L = f'STF_{_lbl[0]}'
    a(f's_cmp_lg_u32 s2, {wg}')
    a(f's_cbranch_scc1 {L}')
    a(f's_cmp_lg_u32 s3, {wave}')
    a(f's_cbranch_scc1 {L}')
    a('s_load_dwordx2 s[92:93], s[0:1], 104')
    a('s_waitcnt lgkmcnt(0)')
    srd(a, 96, ptr=92, size=256)
    a('v_mov_b32 v1, 0')
    for i in range(n):
        a(f'v_mov_b32 v0, s{70+2*i}')
        a(f'buffer_store_dword v0, v1, s[96:99], 0 offen offset:{slot*64+i*4}')
        a('s_nop 1')
    a('s_waitcnt vmcnt(0)')
    a.label(L)
```

```python
from common import *
SLOT = 40960
QSCALE = (28 ** -0.5) * 1.4426950408889634
import struct
def f2u(x): return struct.unpack('<I', struct.pack('<f', x))[0]

def xtype_read_addrs(a, dst, vl, t0, t1):
    a(f'v_and_b32 v{t0}, 31, v{vl}')
    a(f'v_lshrrev_b32 v{t1}, 5, v{vl}')
    a(f'v_bfe_u32 v{dst+3}, v{t0}, 1, 3')
    a(f'v_xor_b32 v{t1}, v{t1}, v{dst+3}')
    a(f'v_lshlrev_b32 v{t0}, 7, v{t0}')
    for s in range(4):
        a(f'v_xor_b32 v{dst+s}, {2*s}, v{t1}')
        a(f'v_lshl_add_u32 v{dst+s}, v{dst+s}, 4, v{t0}')

def gemm_loop(a, nstage, per, reads, mfmas, dma, mid=None, extra=0):
    a(f's_waitcnt vmcnt({per})')
    a('s_barrier')
    stamp(a, 2)
    n = reads(0, 0)
    T = 4 * nstage
    pend = list(dma(2))
    for t in range(T):
        nxt = t + 1
        if nxt < T and nxt % 4 == 0:
            a('s_waitcnt lgkmcnt(0)')
        elif nxt < T:
            n = reads(nxt, nxt & 1)
            a(f's_waitcnt lgkmcnt({n})')
        else:
            a('s_waitcnt lgkmcnt(0)')
        k = (len(pend) + (3 - t % 4)) // (4 - t % 4)
        mine, pend = pend[:k], pend[k:]
        def fill():
            if mine: mine.pop(0)()
        mfmas(t, t & 1, fill)
        while mine: mine.pop(0)()
        if nxt < T and nxt % 4 == 0:
            st = nxt // 4
            assert not pend
            infl = per if st + 1 < nstage else 0
            a(f's_waitcnt vmcnt({infl})')
            a('s_barrier')
            n = reads(nxt, nxt & 1)
            pend = list(dma(st + 2)) if st + 2 < nstage else []

def gen_k1(a):
    name = 'k1_proj_kernel'
    kernel_header(a, name)
    a('s_cmp_ge_u32 s2, 240')
    a('s_cbranch_scc1 K1_END')
    stamp(a, 0); stamp(a, 1, True)
    a('s_load_dwordx2 s[40:41], s[0:1], 112')
    a('v_lshrrev_b32 v1, 6, v0')
    a('v_and_b32 v2, 63, v0')
    a('s_nop 0')
    a('v_readfirstlane_b32 s3, v1')
    a('s_cmp_ge_u32 s2, 128')
    a('s_cbranch_scc1 K1_A')
    VL = 2
    a('s_load_dwordx2 s[36:37], s[0:1], 72')
    a('s_load_dwordx2 s[38:39], s[0:1], 80')
    a('s_and_b32 s20, s2, 7')
    a('s_lshl_b32 s20, s20, 1')
    a('s_bfe_u32 s21, s2, 0x10003')
    a('s_add_u32 s20, s20, s21')
    a('s_lshr_b32 s21, s2, 4')
    a('s_and_b32 s22, s3, 1')
    a('s_lshr_b32 s23, s3, 1')
    a('s_lshl_b32 s24, s20, 7')
    a('s_lshl_b32 s25, s3, 5')
    a('s_add_u32 s24, s24, s25')
    a('v_lshrrev_b32 v6, 3, v2')
    a('v_add_u32 v6, s24, v6')
    a('v_mul_u32_u24 v6, 896, v6')
    a('v_and_b32 v7, 7, v2')
    a('v_lshrrev_b32 v8, 4, v2')
    a('v_xor_b32 v7, v7, v8')
    a('v_lshl_add_u32 v4, v7, 4, v6')
    a('v_xor_b32 v7, 4, v7')
    a('v_lshl_add_u32 v5, v7, 4, v6')
    a('s_mul_i32 s24, s3, 384')
    a('s_mul_i32 s25, s21, 112')
    a('s_mov_b32 s26, 0x7ffffff0')
    for j in range(6):
        a(f'v_add_u32 v6, s24, v2')
        if j: a(f'v_add_u32 v6, {64*j}, v6')
        a('v_mul_u32_u24 v7, 2731, v6')
        a('v_lshrrev_b32 v7, 16, v7')
        a('v_mul_u32_u24 v8, 24, v7')
        a('v_sub_u32 v8, v6, v8')
        a('v_bfe_u32 v9, v7, 1, 1')
        a('v_lshlrev_b32 v9, 2, v9')
        a('v_xor_b32 v8, v8, v9')
        a('v_mul_u32_u24 v9, 37, v8')
        a('v_lshrrev_b32 v9, 8, v9')
        a('v_mul_u32_u24 v16, 7, v9')
        a('v_sub_u32 v16, v8, v16')
        a('v_mul_u32_u24 v7, 2688, v7')
        a('v_mul_u32_u24 v9, 896, v9')
        a('v_add3_u32 v7, v7, v9, s25')
        a(f'v_lshl_add_u32 v{10+j}, v16, 4, v7')
        a('v_cmp_lt_u32 vcc, 20, v8')
        a('v_mov_b32 v9, s26')
        a('s_nop 0')
        a(f'v_cndmask_b32 v{10+j}, v{10+j}, v9, vcc')
    xtype_read_addrs(a, 16, VL, 6, 7)
    a('s_lshl_b32 s24, s22, 13')
    for s in range(4):
        a(f'v_add_u32 v{16+s}, s24, v{16+s}')
        a(f'v_add_u32 v{20+s}, {2*SLOT}, v{16+s}')
    a('v_lshrrev_b32 v6, 5, v2')
    a('v_lshlrev_b32 v6, 3, v6')
    a('v_bfe_u32 v7, v2, 2, 2')
    a('v_add_u32 v6, v6, v7')
    a('v_mul_u32_u24 v6, 384, v6')
    a('v_add_u32 v6, 16384, v6')
    a('v_bfe_u32 v7, v2, 4, 1')
    a('v_lshlrev_b32 v7, 5, v7')
    a('v_and_b32 v8, 3, v2')
    a('v_lshl_add_u32 v7, v8, 3, v7')
    a('s_mul_i32 s24, s23, 56')
    a('v_add_u32 v7, s24, v7')
    a('v_bfe_u32 v8, v2, 3, 1')
    a('v_lshlrev_b32 v8, 6, v8')
    for sg in range(3):
        a(f'v_add_u32 v9, {112*sg}, v7')
        a('v_xor_b32 v9, v9, v8')
        a(f'v_add_u32 v{24+sg}, v9, v6')
        a(f'v_add_u32 v{27+sg}, {2*SLOT}, v{24+sg}')
    a('s_waitcnt lgkmcnt(0)')
    srd(a, 4, ptr=36, size=2048*896)
    srd(a, 8, ptr=38, size=448*2688)
    srd(a, 12, ptr=40, size=0x600000)
    ACC = 32
    XF = 128
    WF = 144
    a('s_lshl_b32 s27, s3, 12')
    a('s_mul_i32 s28, s3, 6144')
    def dma(st):
        base = (st % 3) * SLOT
        L = []
        def mkx(j):
            def f():
                a(f's_add_u32 m0, s27, {base + j*1024}')
                a(f's_mov_b32 s29, {128*st + 7168*j}')
                a(f'buffer_load_dwordx4 v{4+(j&1)}, s[4:7], s29 offen lds')
            return f
        def mkw(j):
            def f():
                a(f's_add_u32 m0, s28, {base + 16384 + j*1024}')
                a(f's_mov_b32 s29, {64*2688*st}')
                a(f'buffer_load_dwordx4 v{10+j}, s[8:11], s29 offen lds')
            return f
        for j in range(6): L.append(mkw(j))
        for j in range(4): L.append(mkx(j))
        return L
    for st in range(2):
        for f in dma(st): f()
    for r in range(96):
        a(f'v_mov_b32 v{ACC+r}, 0')
    def reads(t, buf):
        st, s = t // 4, t % 4
        slot = st % 3
        off = (slot % 2) * SLOT if slot < 2 else 0
        xa = (16 if slot < 2 else 20) + s
        tr = 24 if slot < 2 else 27
        for i in range(2):
            a(f'ds_read_b128 {vr(XF+buf*8+i*4,4)}, v{xa} offset:{off+i*4096}')
        for sg in range(3):
            for sec in range(2):
                a(f'ds_read_b64_tr_b16 {vr(WF+buf*12+sg*4+sec*2,2)}, v{tr+sg} offset:{off+s*6144+sec*1536}')
        return 8
    def mfmas(t, buf, fill):
        for i in range(2):
            x = vr(XF+buf*8+i*4, 4)
            for sg in range(3):
                w = vr(WF+buf*12+sg*4, 4)
                c = vr(ACC+(i*3+sg)*16, 16)
                if sg < 2: a(f'v_mfma_f32_32x32x16_bf16 {c}, {w}, {x}, {c}')
                else:      a(f'v_mfma_f32_32x32x16_bf16 {c}, {x}, {w}, {c}')
                fill()
    gemm_loop(a, 7, 10, reads, mfmas, dma)
    stamp(a, 3)
    a('s_lshl_b32 s24, s21, 1')
    a('s_add_u32 s24, s24, s23')
    a('s_lshl_b32 s24, s24, 6')
    a('s_lshl_b32 s25, s20, 2')
    a('s_add_u32 s24, s24, s25')
    a('s_lshl_b32 s25, s22, 1')
    a('s_add_u32 s24, s24, s25')
    a('s_lshl_b32 s24, s24, 11')
    a('v_lshlrev_b32 v4, 4, v2')
    a('v_add_u32 v4, s24, v4')
    a('s_mov_b32 s30, 0')
    a('s_mov_b32 s31, -1')
    a('v_and_b32 v5, 31, v2')
    a('v_cmp_le_u32 s[32:33], 28, v5')
    a('v_cmp_eq_u32 vcc, 28, v5')
    a('v_mov_b32 v6, 0x3f803f80')
    a('v_mov_b32 v8, 0')
    a('v_cndmask_b32 v7, v8, v6, vcc')
    a(f's_mov_b32 s34, {f2u(QSCALE)}')
    a('s_nop 7')
    for i in range(2):
        for sg in range(3):
            c = ACC + (i*3+sg)*16
            P = XF + ((i*3+sg) % 2) * 8
            if sg == 0:
                for r in range(16):
                    a(f'v_mul_f32 v{c+r}, s34, v{c+r}')
            for j in range(8):
                a(f'v_cvt_pk_bf16_f32 v{P+j}, v{c+2*j}, v{c+2*j+1}')
            if sg == 0:
                a(f'v_cndmask_b32 v{P+6}, v{P+6}, v8, s[30:31]')
                a(f'v_cndmask_b32 v{P+7}, v{P+7}, v8, s[30:31]')
            elif sg == 1:
                a(f'v_cndmask_b32 v{P+6}, v{P+6}, v6, s[30:31]')
                a(f'v_cndmask_b32 v{P+7}, v{P+7}, v8, s[30:31]')
            else:
                for j in range(8):
                    a(f'v_cndmask_b32 v{P+j}, v{P+j}, v7, s[32:33]')
            a(f's_mov_b32 s29, {sg*0x200000 + i*2048}')
            a(f'buffer_store_dwordx4 {vr(P,4)}, v4, s[12:15], s29 offen')
            a(f'buffer_store_dwordx4 {vr(P+4,4)}, v4, s[12:15], s29 offen offset:1024')
            a('s_nop 1')
    stamp(a, 4); a('s_waitcnt vmcnt(0)') if STAMPS else None; stamp(a, 5); stamp(a, 6, True)
    stamp_flush(a, 8, 7, 0); stamp_flush(a, 127, 7, 2)
    a('s_endpgm')
    a.label('K1_A')
    a('s_load_dwordx2 s[36:37], s[0:1], 0')
    a('s_load_dwordx4 s[44:47], s[0:1], 24')
    a('s_load_dwordx4 s[48:51], s[0:1], 8')
    a('s_load_dwordx2 s[52:53], s[0:1], 56')
    a('s_sub_u32 s19, s2, 128')
    a('s_and_b32 s20, s19, 7')
    a('s_lshl_b32 s20, s20, 1')
    a('s_bfe_u32 s21, s19, 0x10003')
    a('s_add_u32 s20, s20, s21')
    a('s_lshr_b32 s21, s19, 4')
    a('s_and_b32 s22, s3, 1')
    a('s_lshr_b32 s23, s3, 1')
    a('s_lshl_b32 s24, s20, 7')
    a('s_lshl_b32 s25, s23, 6')
    a('s_add_u32 s24, s24, s25')
    a('s_lshl_b32 s25, s22, 4')
    a('s_add_u32 s24, s24, s25')
    a('v_lshrrev_b32 v6, 5, v2')
    a('v_lshlrev_b32 v6, 5, v6')
    a('v_bfe_u32 v7, v2, 3, 2')
    a('v_add3_u32 v6, v6, v7, s24')
    a('v_mul_u32_u24 v6, 896, v6')
    a('v_and_b32 v7, 7, v2')
    a('v_lshrrev_b32 v8, 4, v2')
    a('v_xor_b32 v7, v7, v8')
    a('v_xor_b32 v9, 4, v7')
    a('v_lshl_add_u32 v4, v7, 4, v6')
    a('v_lshl_add_u32 v5, v9, 4, v6')
    a('s_lshl_b32 s24, s21, 1')
    a('s_add_u32 s24, s24, s23')
    a('s_lshl_b32 s24, s24, 5')
    a('v_lshrrev_b32 v6, 3, v2')
    a('v_add_u32 v6, s24, v6')
    a('v_mul_u32_u24 v6, 896, v6')
    a('v_lshl_add_u32 v10, v7, 4, v6')
    a('v_lshl_add_u32 v11, v9, 4, v6')
    xtype_read_addrs(a, 16, VL, 6, 7)
    a('s_lshl_b32 s24, s22, 13')
    a('s_lshl_b32 s25, s23, 13')
    a('s_add_u32 s25, s25, 16384')
    for s in range(4):
        a(f'v_add_u32 v{24+s}, s25, v{16+s}')
        a(f'v_add_u32 v{28+s}, {2*SLOT}, v{24+s}')
        a(f'v_add_u32 v{16+s}, s24, v{16+s}')
        a(f'v_add_u32 v{20+s}, {2*SLOT}, v{16+s}')
    a('s_waitcnt lgkmcnt(0)')
    srd(a, 4, ptr=36, size=2048*896)
    a('s_cmp_eq_u32 s22, 0')
    a('s_cselect_b32 s38, s44, s46')
    a('s_cselect_b32 s39, s45, s47')
    srd(a, 8, ptr=38, size=448*896)
    srd(a, 12, ptr=40, size=WS_HF)
    srd(a, 56, ptr=48, size=896)
    srd(a, 60, ptr=50, size=896)
    srd(a, 64, ptr=52, size=896)
    ACC = 32
    XF = 96; WF = 112
    LR, LI, CR, CI = 138, 139, 140, 141
    a('s_lshl_b32 s24, s21, 1')
    a('s_add_u32 s24, s24, s23')
    a('s_lshl_b32 s25, s24, 6')
    a('v_and_b32 v128, 31, v2')
    a('v_lshlrev_b32 v128, 1, v128')
    a('v_add_u32 v128, s25, v128')
    lam_params(a, 128, 130, 56, LR, LI, coef=(CR, CI), phase=1)
    a('s_lshl_b32 s27, s3, 12')
    def dma(st):
        base = (st % 3) * SLOT
        L = []
        def mkx(j):
            def f():
                a(f's_add_u32 m0, s27, {base + j*1024}')
                a(f's_mov_b32 s29, {128*st + 3584*j}')
                a(f'buffer_load_dwordx4 v{4+(j&1)}, s[4:7], s29 offen lds')
            return f
        def mkw(j):
            def f():
                a(f's_add_u32 m0, s27, {base + 16384 + j*1024}')
                a(f's_mov_b32 s29, {128*st + 7168*j}')
                a(f'buffer_load_dwordx4 v{10+(j&1)}, s[8:11], s29 offen lds')
            return f
        for j in range(4): L.append(mkw(j))
        for j in range(4): L.append(mkx(j))
        return L
    for st in range(2):
        for f in dma(st): f()
    for r in range(64):
        a(f'v_mov_b32 v{ACC+r}, 0')
    a('s_waitcnt vmcnt(16)')
    lam_params(a, 128, 130, 56, LR, LI, coef=(CR, CI), phase=2)
    def reads(t, buf):
        st, s = t // 4, t % 4
        slot = st % 3
        off = slot * SLOT if slot < 2 else 0
        xa = (16 if slot < 2 else 20) + s
        wa = (24 if slot < 2 else 28) + s
        for i in range(2):
            a(f'ds_read_b128 {vr(XF+buf*8+i*4,4)}, v{xa} offset:{off+i*4096}')
        for i in range(2):
            a(f'ds_read_b128 {vr(WF+buf*8+i*4,4)}, v{wa} offset:{off+i*4096}')
        return 4
    def mfmas(t, buf, fill):
        for i in range(2):
            for p in range(2):
                c = vr(ACC+(i*2+p)*16, 16)
                a(f'v_mfma_f32_32x32x16_bf16 {c}, {vr(XF+buf*8+i*4,4)}, {vr(WF+buf*8+p*4,4)}, {c}')
                fill()
    gemm_loop(a, 7, 8, reads, mfmas, dma)
    stamp(a, 3)
    a('s_lshl_b32 s24, s21, 1')
    a('s_add_u32 s24, s24, s23')
    a('s_lshl_b32 s25, s24, 5')
    a('v_and_b32 v4, 31, v2')
    a('v_add_u32 v4, s25, v4')
    a('v_lshlrev_b32 v5, 1, v4')
    T = 16
    a('s_lshl_b32 s25, s20, 1')
    a('s_add_u32 s25, s25, s22')
    a('s_mul_i32 s26, s25, 14')
    a('s_add_u32 s26, s26, s24')
    a('s_lshl_b32 s26, s26, 14')
    a(f's_add_u32 s26, s26, {WS_BU}')
    a('v_lshlrev_b32 v10, 4, v2')
    HR, HI = 12, 13
    a(f'v_mov_b32 v{HR}, 0')
    a(f'v_mov_b32 v{HI}, 0')
    for it in range(2):
        R = ACC + (it*2)*16; I = R + 16
        for r in range(16):
            a(f'v_mul_f32 v14, v{CI}, v{I+r}')
            a(f'v_mul_f32 v15, v{CI}, v{R+r}')
            a(f'v_fma_f32 v{R+r}, v{CR}, v{R+r}, -v14')
            a(f'v_fma_f32 v{I+r}, v{CR}, v{I+r}, v15')
            a(f'v_fma_f32 v14, v{LR}, v{HR}, v{R+r}')
            a(f'v_fma_f32 v15, v{LR}, v{HI}, v{I+r}')
            a(f'v_fma_f32 v15, v{LI}, v{HR}, v15')
            a(f'v_fma_f32 v{HR}, -v{LI}, v{HI}, v14')
            a(f'v_mov_b32 v{HI}, v15')
            if r % 4 == 3:
                q = it*4 + r//4
                a(f'buffer_store_dwordx4 {vr(R+r-3,4)}, v10, s[12:15], s26 offen offset:{(q%4)*1024}') if False else None
        for part in range(2):
            a(f's_add_u32 s29, s26, {part*8192 + it*4096}')
            for q in range(4):
                a(f'buffer_store_dwordx4 {vr(R+part*16+q*4,4)}, v10, s[12:15], s29 offen offset:{q*1024}')
    for k in range(5):
        csq(a, LR, LI, LR, LI, 14)
    a(f'v_mov_b32 v16, v{HR}')
    a(f'v_mov_b32 v17, v{HR}')
    a(f'v_mov_b32 v18, v{HI}')
    a(f'v_mov_b32 v19, v{HI}')
    a('s_nop 1')
    a('v_permlane32_swap_b32 v16, v17')
    a('v_permlane32_swap_b32 v18, v19')
    a('s_nop 1')
    a(f'v_fma_f32 v20, v{LR}, v16, v17')
    a(f'v_fma_f32 v21, v{LR}, v18, v19')
    a(f'v_fma_f32 v20, -v{LI}, v18, v20')
    a(f'v_fma_f32 v21, v{LI}, v16, v21')
    a('s_mov_b32 s30, 0')
    a('s_mov_b32 s31, -1')
    a(f'v_cndmask_b32 v20, v{HR}, v20, s[30:31]')
    a(f'v_cndmask_b32 v21, v{HI}, v21, s[30:31]')
    a('v_lshrrev_b32 v5, 5, v2')
    a('v_mul_u32_u24 v5, 448, v5')
    a('v_add_u32 v5, v5, v4')
    a('v_lshlrev_b32 v5, 3, v5')
    a('s_mul_i32 s29, s25, 7168')
    a(f's_add_u32 s29, s29, {WS_EE}')
    a('buffer_store_dwordx2 v[20:21], v5, s[12:15], s29 offen')
    stamp(a, 4); a('s_waitcnt vmcnt(0)') if STAMPS else None; stamp(a, 5); stamp(a, 6, True)
    stamp_flush(a, 136, 7, 1); stamp_flush(a, 239, 7, 3)
    a.label('K1_END')
    a('s_endpgm')
    return name, 168
```

```python
from common import *
import struct
def f2u(x): return struct.unpack('<I', struct.pack('<f', x))[0]
NATT = 256
NSCAN = 112

def set_standin(a, Q1, M, t0, t1, t2):
    a(f'v_cvt_pk_bf16_f32 v{t0}, -v{M}, -v{M}')
    a(f'v_and_b32 v{t0}, 0xffff0000, v{t0}')
    a(f'v_sub_f32 v{t1}, -v{M}, v{t0}')
    a(f'v_cvt_pk_bf16_f32 v{t1}, v{t1}, v{t1}')
    a(f'v_and_b32 v{t1}, 0xffff0000, v{t1}')
    a(f'v_add_f32 v{M}, v{t0}, v{t1}')
    a(f'v_sub_f32 v{M}, 0, v{M}')
    a(f'v_lshrrev_b32 v{t2}, 16, v{t0}')
    a(f'v_or_b32 v{t2}, v{t2}, v{t1}')
    a(f'v_cndmask_b32 v{Q1+2}, v{Q1+2}, v{t2}, s[30:31]')

def colmax(a, S, M, t0):
    a(f'v_max3_f32 v{M}, v{S}, v{S+1}, v{S+2}')
    for r in range(3, 15, 2):
        a(f'v_max3_f32 v{M}, v{M}, v{S+r}, v{S+r+1}')
    a(f'v_max_f32 v{M}, v{M}, v{S+15}')
    xhalf_max(a, M, t0)

def xhalf_max(a, M, t0):
    a(f'v_mov_b32 v{t0}, v{M}')
    a('s_nop 1')
    a(f'v_permlane32_swap_b32 v{M}, v{t0}')
    a('s_nop 1')
    a(f'v_max_f32 v{M}, v{M}, v{t0}')

def gen_k2(a):
    name = 'k2_attn_kernel'
    kernel_header(a, name)
    a(f's_cmp_ge_u32 s2, {NATT+NSCAN}')
    a('s_cbranch_scc1 K2_END')
    stamp(a, 0); stamp(a, 1, True)
    a('s_load_dwordx2 s[40:41], s[0:1], 112')
    a('v_lshrrev_b32 v1, 6, v0')
    a('v_and_b32 v2, 63, v0')
    a('s_nop 0')
    a('v_readfirstlane_b32 s3, v1')
    a('s_mov_b32 s30, 0')
    a('s_mov_b32 s31, -1')
    a(f's_cmp_ge_u32 s2, {NATT}')
    a('s_cbranch_scc1 K2_SCAN')
    a('s_setprio 2')
    a('s_and_b32 s20, s2, 7')
    a('s_lshl_b32 s20, s20, 1')
    a('s_bfe_u32 s21, s2, 0x10003')
    a('s_add_u32 s20, s20, s21')
    a('s_lshr_b32 s21, s2, 4')
    a('s_and_b32 s22, s3, 3')
    a('s_lshr_b32 s23, s3, 2')
    a('v_lshlrev_b32 v4, 4, v2')
    a('s_lshl_b32 s24, s23, 13')
    a('v_add_u32 v5, s24, v4')
    a('s_lshl_b32 s25, s20, 6')
    a('s_lshl_b32 s26, s21, 2')
    a('s_add_u32 s26, s26, s22')
    a('s_add_u32 s27, s25, s26')
    a('s_lshl_b32 s27, s27, 11')
    a('s_lshl_b32 s28, s23, 5')
    a('s_add_u32 s28, s28, s25')
    a('s_lshl_b32 s28, s28, 11')
    a(f's_add_u32 s33, s28, {WS_KF}')
    a(f's_add_u32 s34, s28, {WS_VF}')
    a('s_cmp_lt_u32 s22, 2')
    a('s_cselect_b32 s28, s33, s34')
    a('s_and_b32 s29, s22, 1')
    a('s_lshl_b32 s29, s29, 11')
    a('s_add_u32 s28, s28, s29')
    a('s_lshl_b32 s29, s22, 11')
    a('s_add_u32 s29, s29, s24')
    O, S0, S1, P, Q, KB, VB, M = 16, 32, 48, 64, 72, 80, 96, 6
    a('s_waitcnt lgkmcnt(0)')
    srd(a, 4, ptr=40, size=WS_END)
    a(f'buffer_load_dwordx4 {vr(Q,4)}, v4, s[4:7], s27 offen')
    a(f'buffer_load_dwordx4 {vr(Q+4,4)}, v4, s[4:7], s27 offen offset:1024')
    def dma(slot):
        a(f's_add_u32 m0, s29, {slot*16384}')
        a('s_nop 0')
        a('buffer_load_dwordx4 v4, s[4:7], s28 offen lds')
        a('buffer_load_dwordx4 v4, s[4:7], s28 offen offset:1024 lds')
        a('s_add_u32 s28, s28, 4096')
    dma(0); dma(1)
    a('s_lshl_b32 s36, s21, 2')
    a('s_add_u32 s36, s36, s25')
    a('s_lshl_b32 s36, s36, 11')
    a(f's_add_u32 s36, s36, {WS_KF}')
    a('s_lshl_b32 s37, s23, 21')
    a('s_add_u32 s36, s36, s37')
    a('s_lshl_b32 s37, s22, 11')
    a('s_add_u32 s36, s36, s37')
    a('v_and_b32 v7, 15, v2')
    a('v_lshlrev_b32 v7, 7, v7')
    a('buffer_load_dword v112, v7, s[4:7], s36 offen')
    dma(2)
    for r in range(16): a(f'v_mov_b32 v{O+r}, 0')
    def rdK(tile, buf):
        off = ((tile >> 1) & 3) * 16384 + (tile & 1) * 2048
        a(f'ds_read_b128 {vr(KB+buf*8,4)}, v5 offset:{off}')
        a(f'ds_read_b128 {vr(KB+buf*8+4,4)}, v5 offset:{off+1024}')
    def rdV(tile, buf):
        off = ((tile >> 1) & 3) * 16384 + 4096 + (tile & 1) * 2048
        a(f'ds_read_b128 {vr(VB+buf*8,4)}, v5 offset:{off}')
        a(f'ds_read_b128 {vr(VB+buf*8+4,4)}, v5 offset:{off+1024}')
    def qk(S, kb, which):
        if which == 0: a(f'v_mfma_f32_32x32x16_bf16 {vr(S,16)}, {vr(kb,4)}, {vr(Q,4)}, 0')
        else:          a(f'v_mfma_f32_32x32x16_bf16 {vr(S,16)}, {vr(kb+4,4)}, {vr(Q+4,4)}, {vr(S,16)}')
    a('s_waitcnt vmcnt(5)')
    a('s_barrier')
    stamp(a, 2)
    rdK(0, 0); rdK(1, 1); rdV(0, 0)
    a('s_waitcnt lgkmcnt(4)')
    qk(S0, KB, 0); qk(S0, KB, 1)
    a('s_nop 7'); a('s_nop 3')
    colmax(a, S0, M, 7)
    set_standin(a, Q+4, M, 7, 8, 9)
    a('s_nop 1')
    qk(S0, KB, 0); qk(S0, KB, 1)
    for j in range(4):
        a(f'v_mov_b32 v{P+4+j}, 0')
        a(f'v_mov_b32 v{VB+12+j}, 0')
    a('s_mov_b32 s35, 4')
    a.label('K2_LOOP')
    def ex(S, r): a(f'v_exp_f32 v{S+r}, v{S+r}')
    def cv(S, j): a(f'v_cvt_pk_bf16_f32 v{P+j}, v{S+2*j}, v{S+2*j+1}')
    for t in range(8):
        Sc = S0 if t % 2 == 0 else S1
        Sn = S1 if t % 2 == 0 else S0
        kn = KB + ((t+1) & 1) * 8
        vc = VB + (t & 1) * 8
        vp = VB + ((t+1) & 1) * 8
        if t % 2 == 0:
            a('s_waitcnt vmcnt(2) lgkmcnt(0)')
            a('s_barrier')
        else:
            a('s_waitcnt lgkmcnt(0)')
        rdK(t+2, t & 1)
        a(f'v_mfma_f32_32x32x16_bf16 {vr(O,16)}, {vr(vp+4,4)}, {vr(P+4,4)}, {vr(O,16)}')
        for r in range(4): ex(Sc, r)
        rdV(t+1, (t+1) & 1)
        cv(Sc, 0); cv(Sc, 1)
        qk(Sn, kn, 0)
        for r in range(4, 8): ex(Sc, r)
        if t % 2 == 0: dma(((t >> 1) + 3) & 3)
        cv(Sc, 2); cv(Sc, 3)
        qk(Sn, kn, 1)
        for r in range(8, 12): ex(Sc, r)
        cv(Sc, 4); cv(Sc, 5)
        a(f'v_mfma_f32_32x32x16_bf16 {vr(O,16)}, {vr(vc,4)}, {vr(P,4)}, {vr(O,16)}')
        for r in range(12, 16): ex(Sc, r)
        cv(Sc, 6); cv(Sc, 7)
    a('s_sub_u32 s35, s35, 1')
    a('s_cmp_lg_u32 s35, 0')
    a('s_cbranch_scc1 K2_LOOP')
    a('s_nop 0')
    a(f'v_mfma_f32_32x32x16_bf16 {vr(O,16)}, {vr(VB+12,4)}, {vr(P+4,4)}, {vr(O,16)}')
    stamp(a, 3)
    a('s_nop 7'); a('s_nop 3')
    a(f'v_mov_b32 v7, 0x4e800000')
    a(f'v_cmp_nlt_f32 vcc, v{O+12}, v7')
    a('s_nop 1')
    a('s_and_b64 vcc, vcc, s[30:31]')
    a('s_cbranch_vccz K2_MERGE')
    a(f'v_mov_b32 v8, 0xff800000')
    a('s_mov_b32 s35, 32')
    a('s_mov_b32 s36, s33')
    a.label('K2_FB1')
    a(f'buffer_load_dwordx4 {vr(KB,4)}, v4, s[4:7], s36 offen')
    a(f'buffer_load_dwordx4 {vr(KB+4,4)}, v4, s[4:7], s36 offen offset:1024')
    a('s_waitcnt vmcnt(0)')
    qk(S0, KB, 0); qk(S0, KB, 1)
    a('s_nop 7'); a('s_nop 3')
    for r in range(0, 16, 2):
        a(f'v_max3_f32 v8, v8, v{S0+r}, v{S0+r+1}')
    a('s_add_u32 s36, s36, 2048')
    a('s_sub_u32 s35, s35, 1')
    a('s_cmp_lg_u32 s35, 0')
    a('s_cbranch_scc1 K2_FB1')
    xhalf_max(a, 8, 7)
    a(f'v_add_f32 v{M}, v{M}, v8')
    set_standin(a, Q+4, M, 7, 8, 9)
    for r in range(16): a(f'v_mov_b32 v{O+r}, 0')
    a('s_mov_b32 s35, 32')
    a('s_mov_b32 s36, s33')
    a('s_mov_b32 s37, s34')
    a.label('K2_FB2')
    a(f'buffer_load_dwordx4 {vr(KB,4)}, v4, s[4:7], s36 offen')
    a(f'buffer_load_dwordx4 {vr(KB+4,4)}, v4, s[4:7], s36 offen offset:1024')
    a(f'buffer_load_dwordx4 {vr(VB,4)}, v4, s[4:7], s37 offen')
    a(f'buffer_load_dwordx4 {vr(VB+4,4)}, v4, s[4:7], s37 offen offset:1024')
    a('s_waitcnt vmcnt(0)')
    qk(S0, KB, 0); qk(S0, KB, 1)
    a('s_nop 7'); a('s_nop 3')
    for r in range(16): a(f'v_exp_f32 v{S0+r}, v{S0+r}')
    a('s_nop 1')
    for j in range(8): a(f'v_cvt_pk_bf16_f32 v{P+j}, v{S0+2*j}, v{S0+2*j+1}')
    a('s_nop 1')
    a(f'v_mfma_f32_32x32x16_bf16 {vr(O,16)}, {vr(VB,4)}, {vr(P,4)}, {vr(O,16)}')
    a(f'v_mfma_f32_32x32x16_bf16 {vr(O,16)}, {vr(VB+4,4)}, {vr(P+4,4)}, {vr(O,16)}')
    a('s_add_u32 s36, s36, 2048')
    a('s_add_u32 s37, s37, 2048')
    a('s_sub_u32 s35, s35, 1')
    a('s_cmp_lg_u32 s35, 0')
    a('s_cbranch_scc1 K2_FB2')
    a('s_nop 7'); a('s_nop 3')
    a.label('K2_MERGE')
    a('s_waitcnt vmcnt(0) lgkmcnt(0)')
    a('s_barrier')
    a('s_mul_i32 s36, s22, 5120')
    a('v_add_u32 v8, s36, v4')
    a('v_lshlrev_b32 v9, 2, v2')
    a('v_add_u32 v9, s36, v9')
    a('s_cmp_eq_u32 s23, 0')
    a('s_cbranch_scc1 K2_M0')
    for q in range(4):
        a(f'ds_write_b128 v8, {vr(O+4*q,4)} offset:{q*1024}')
    a(f'ds_write_b32 v9, v{M} offset:4096')
    a('s_waitcnt lgkmcnt(0)')
    a('s_barrier')
    a('s_endpgm')
    a.label('K2_M0')
    a('s_barrier')
    for q in range(4):
        a(f'ds_read_b128 {vr(S0+4*q,4)}, v8 offset:{q*1024}')
    a(f'ds_read_b32 v10, v9 offset:4096')
    a('s_waitcnt lgkmcnt(0)')
    a(f'v_max_f32 v11, v{M}, v10')
    a(f'v_sub_f32 v12, v{M}, v11')
    a(f'v_sub_f32 v13, v10, v11')
    a('v_exp_f32 v12, v12')
    a('v_exp_f32 v13, v13')
    a('s_nop 1')
    a(f'v_mul_f32 v14, v12, v{O+12}')
    a(f'v_fmac_f32 v14, v13, v{S0+12}')
    a('v_mov_b32 v15, v14')
    a('s_nop 1')
    a('v_permlane32_swap_b32 v15, v14')
    a('s_nop 1')
    a('v_rcp_f32 v14, v14')
    a('s_nop 1')
    a('v_mul_f32 v12, v12, v14')
    a('v_mul_f32 v13, v13, v14')
    for r in range(16):
        a(f'v_mul_f32 v{O+r}, v12, v{O+r}')
        a(f'v_fmac_f32 v{O+r}, v13, v{S0+r}')
    for j in range(8): a(f'v_cvt_pk_bf16_f32 v{P+j}, v{O+2*j}, v{O+2*j+1}')
    a('v_mov_b32 v7, 0')
    a(f'v_cndmask_b32 v{P+6}, v{P+6}, v7, s[30:31]')
    a(f'v_cndmask_b32 v{P+7}, v{P+7}, v7, s[30:31]')
    a('s_lshl_b32 s36, s26, 4')
    a('s_add_u32 s36, s36, s20')
    a('s_lshl_b32 s36, s36, 11')
    a(f's_add_u32 s36, s36, {WS_OF}')
    a(f'buffer_store_dwordx4 {vr(P,4)}, v4, s[4:7], s36 offen')
    a(f'buffer_store_dwordx4 {vr(P+4,4)}, v4, s[4:7], s36 offen offset:1024')
    stamp(a, 4); a('s_waitcnt vmcnt(0)') if STAMPS else None; stamp(a, 5); stamp(a, 6, True)
    stamp_flush(a, 8, 7, 0); stamp_flush(a, 250, 7, 2)
    a('s_endpgm')
    a.label('K2_SCAN')
    a('s_cmp_ge_u32 s3, 4')
    a('s_cbranch_scc1 K2_END')
    a(f's_setprio {os.environ.get("SCANPRIO", "0")}')
    a('s_load_dwordx4 s[48:51], s[0:1], 8')
    a('s_load_dwordx2 s[52:53], s[0:1], 56')
    a(f's_sub_u32 s19, s2, {NATT}')
    a('s_and_b32 s20, s19, 7')
    a('s_lshl_b32 s20, s20, 2')
    a('s_add_u32 s20, s20, s3')
    a('s_lshr_b32 s21, s19, 3')
    a('s_mul_i32 s26, s20, 14')
    a('s_add_u32 s26, s26, s21')
    a('s_lshl_b32 s26, s26, 14')
    a(f's_add_u32 s26, s26, {WS_BU}')
    a('v_lshlrev_b32 v10, 4, v2')
    a('s_lshl_b32 s25, s21, 5')
    a('v_and_b32 v4, 31, v2')
    a('v_add_u32 v4, s25, v4')
    a('v_lshlrev_b32 v5, 1, v4')
    a('v_lshrrev_b32 v3, 5, v2')
    BU, EE = 32, 96
    a('s_waitcnt lgkmcnt(0)')
    srd(a, 4, ptr=40, size=WS_END)
    srd(a, 8, ptr=40, size=32*7168, add=WS_EE)
    srd(a, 56, ptr=48, size=896)
    srd(a, 60, ptr=50, size=896)
    srd(a, 64, ptr=52, size=896)
    a('s_sub_u32 s24, s20, 1')
    a('v_sub_u32 v11, s24, v3')
    a('s_movk_i32 s23, 7168')
    a('v_mul_lo_u32 v11, v11, s23')
    a('v_lshl_add_u32 v11, v4, 3, v11')
    a('v_add_u32 v11, 3584, v11')
    for i in range(16):
        a(f'buffer_load_dwordx2 {vr(EE+2*i,2)}, v11, s[8:11], 0 offen')
        if i < 15: a(f'v_subrev_u32 v11, 14336, v11')
    a('s_mul_i32 s24, s20, 7168')
    a('v_lshlrev_b32 v12, 3, v4')
    a('buffer_load_dwordx2 v[14:15], v12, s[8:11], s24 offen')
    for part in range(2):
        for q in range(8):
            a(f's_add_u32 s29, s26, {part*8192 + (q//4)*4096}')
            a(f'buffer_load_dwordx4 {vr(BU+part*32+q*4,4)}, v10, s[4:7], s29 offen offset:{(q%4)*1024}')
    LR, LI = 6, 7
    lam_params(a, 5, 16, 56, LR, LI)
    stamp(a, 2)
    a(f'v_mov_b32 v8, v{LR}')
    a(f'v_mov_b32 v9, v{LI}')
    for k in range(5): csq(a, 8, 9, 8, 9, 16)
    csq(a, 12, 13, 8, 9, 16)
    csq(a, 24, 25, 12, 13, 16)
    a(f'v_mov_b32 v26, v{EE+30}')
    a(f'v_mov_b32 v27, v{EE+31}')
    for i in range(14, -1, -1):
        a(f'v_fma_f32 v16, v24, v26, v{EE+2*i}')
        a(f'v_fma_f32 v17, v24, v27, v{EE+2*i+1}')
        a(f'v_fma_f32 v16, -v25, v27, v16')
        a(f'v_fma_f32 v27, v25, v26, v17')
        a(f'v_mov_b32 v26, v16')
    a('v_mov_b32 v16, v26')
    a('v_mov_b32 v17, v27')
    a('s_nop 1')
    a('v_permlane32_swap_b32 v26, v16')
    a('v_permlane32_swap_b32 v27, v17')
    a('s_nop 1')
    a('v_fma_f32 v26, v12, v16, v26')
    a('v_fma_f32 v27, v12, v17, v27')
    a('v_fma_f32 v26, -v13, v17, v26')
    a('v_fma_f32 v27, v13, v16, v27')
    a('v_fma_f32 v16, v8, v26, v14')
    a('v_fma_f32 v17, v8, v27, v15')
    a('v_fma_f32 v16, -v9, v27, v16')
    a('v_fma_f32 v17, v9, v26, v17')
    a('v_cndmask_b32 v26, v26, v16, s[30:31]')
    a('v_cndmask_b32 v27, v27, v17, s[30:31]')
    R, I = BU, BU + 32
    pr, pi = 26, 27
    for t in range(32):
        a(f'v_fma_f32 v{R+t}, v{LR}, v{pr}, v{R+t}')
        a(f'v_fma_f32 v{I+t}, v{LR}, v{pi}, v{I+t}')
        a(f'v_fma_f32 v{R+t}, -v{LI}, v{pi}, v{R+t}')
        a(f'v_fma_f32 v{I+t}, v{LI}, v{pr}, v{I+t}')
        pr, pi = R+t, I+t
    stamp(a, 3)
    a('s_mul_i32 s24, s3, 6144')
    a('v_and_b32 v8, 31, v2')
    a('v_mul_u32_u24 v8, 192, v8')
    a('v_lshl_add_u32 v8, v3, 6, v8')
    a('v_add_u32 v8, s24, v8')
    a('v_lshlrev_b32 v9, 3, v3')
    a('v_bfe_u32 v12, v2, 2, 2')
    a('v_add_u32 v9, v9, v12')
    a('v_mul_u32_u24 v9, 192, v9')
    a('v_bfe_u32 v12, v2, 4, 1')
    a('v_lshl_add_u32 v9, v12, 5, v9')
    a('v_and_b32 v12, 3, v2')
    a('v_lshl_add_u32 v9, v12, 3, v9')
    a('v_add_u32 v9, s24, v9')
    a('s_mul_i32 s27, s20, 112')
    a('s_lshl_b32 s28, s21, 1')
    a('s_add_u32 s27, s27, s28')
    a('s_lshl_b32 s27, s27, 10')
    a(f's_add_u32 s27, s27, {WS_HF}')
    PK, FR = 96, 112
    for part in range(2):
        B = BU + part*32
        ng = '-' if part else ''
        for j in range(16):
            a(f'v_cvt_pk_bf16_f32 v{PK+j}, {ng}v{B+2*j}, {ng}v{B+2*j+1}')
        if part: a('s_waitcnt lgkmcnt(0)')
        for q in range(4):
            a(f'ds_write_b128 v8, {vr(PK+q*4,4)} offset:{q*16}')
        a('s_waitcnt lgkmcnt(0)')
        if part: a('s_nop 0')
        F = FR if part == 0 else BU
        for hp in range(2):
            for e in range(2):
                for sec in range(2):
                    a(f'ds_read_b64_tr_b16 {vr(F+(hp*2+e)*4+sec*2,2)}, v9 offset:{(16*e+4*sec)*192 + hp*64}')
        a('s_waitcnt lgkmcnt(0)')
        for hp in range(2):
            for e in range(2):
                a(f's_add_u32 s29, s27, {(hp*56 + part*28 + e)*1024}')
                a(f'buffer_store_dwordx4 {vr(F+(hp*2+e)*4,4)}, v10, s[4:7], s29 offen')
    stamp(a, 4); a('s_waitcnt vmcnt(0)') if STAMPS else None; stamp(a, 5); stamp(a, 6, True)
    stamp_flush(a, NATT+8, 7, 1); stamp_flush(a, NATT+110, 7, 3)
    a.label('K2_END')
    a('s_endpgm')
    return name, 128
```

```python
from common import *
from k1 import xtype_read_addrs

def gen_k3(a):
    name = 'k3_out_kernel'
    kernel_header(a, name)
    a('s_cmp_ge_u32 s2, 224')
    a('s_cbranch_scc1 K3_END')
    stamp(a, 0); stamp(a, 1, True)
    a('s_load_dwordx2 s[40:41], s[0:1], 112')
    a('s_load_dwordx2 s[42:43], s[0:1], 96')
    a('v_lshrrev_b32 v1, 6, v0')
    a('v_and_b32 v2, 63, v0')
    a('s_nop 0')
    a('v_readfirstlane_b32 s3, v1')
    a('s_cmp_ge_u32 s2, 112')
    a('s_cselect_b32 s19, 112, 0')
    a('s_sub_u32 s19, s2, s19')
    a('s_and_b32 s20, s19, 7')
    a('s_lshl_b32 s20, s20, 1')
    a('s_bfe_u32 s21, s19, 0x10003')
    a('s_add_u32 s20, s20, s21')
    a('s_lshr_b32 s21, s19, 4')
    a('s_lshl_b32 s22, s20, 2')
    a('s_add_u32 s22, s22, s3')
    a('v_lshlrev_b32 v4, 4, v2')
    a('s_lshl_b32 s24, s22, 5')
    a('v_and_b32 v5, 31, v2')
    a('v_add_u32 v5, s24, v5')
    a('v_lshrrev_b32 v3, 5, v2')
    a('v_mul_u32_u24 v6, 3584, v5')
    a('v_lshl_add_u32 v6, v3, 4, v6')
    a('s_lshl_b32 s24, s21, 8')
    a('v_add_u32 v6, s24, v6')
    ACC = 32; ACT = 64; WF = 192
    for r in range(32): a(f'v_mov_b32 v{ACC+r}, 0')
    a('s_cmp_ge_u32 s2, 112')
    a('s_cbranch_scc1 K3_B')
    a('s_load_dwordx4 s[44:47], s[0:1], 40')
    a('s_load_dwordx2 s[48:49], s[0:1], 0')
    a('s_load_dwordx2 s[50:51], s[0:1], 64')
    a('s_lshl_b32 s24, s21, 6')
    a('s_lshl_b32 s25, s3, 4')
    a('s_add_u32 s24, s24, s25')
    a('v_lshrrev_b32 v8, 3, v2')
    a('v_add_u32 v8, s24, v8')
    a('v_mul_u32_u24 v8, 896, v8')
    a('v_and_b32 v9, 7, v2')
    a('v_lshrrev_b32 v10, 4, v2')
    a('v_xor_b32 v9, v9, v10')
    a('v_xor_b32 v10, 4, v9')
    a('v_lshl_add_u32 v12, v9, 4, v8')
    a('v_lshl_add_u32 v13, v10, 4, v8')
    a('v_add_u32 v13, 7168, v13')
    xtype_read_addrs(a, 16, 2, 8, 9)
    for s in range(4): a(f'v_add_u32 v{20+s}, 57344, v{16+s}')
    a('v_mul_u32_u24 v24, 896, v5')
    a('v_lshl_add_u32 v24, v3, 3, v24')
    a('s_lshl_b32 s24, s21, 7')
    a('v_add_u32 v24, s24, v24')
    a('v_lshlrev_b32 v25, 3, v3')
    a('v_add_u32 v25, s24, v25')
    a('s_waitcnt lgkmcnt(0)')
    srd(a, 4, ptr=40, size=WS_END)
    srd(a, 8, ptr=44, size=448*896)
    srd(a, 12, ptr=46, size=448*896)
    srd(a, 16, ptr=42, size=2048*3584)
    srd(a, 52, ptr=48, size=2048*896)
    srd(a, 56, ptr=50, size=896)
    a('s_mul_i32 s26, s22, 57344')
    a(f's_add_u32 s26, s26, {WS_HF}')
    a('s_lshl_b32 s27, s3, 11')
    def dma(st):
        srdn = 8 if st < 7 else 12
        for j in range(2):
            a(f's_add_u32 m0, s27, {st*8192 + j*1024}')
            a(f's_movk_i32 s29, {128*(st % 7)}')
            a(f'buffer_load_dwordx4 v{12+j}, s[{srdn}:{srdn+3}], s29 offen lds')
    def act(st):
        a(f's_add_u32 s29, s26, {st*4096}')
        for k in range(4):
            a(f'buffer_load_dwordx4 {vr(ACT+((st%7)*4+k)*4,4)}, v4, s[4:7], s29 offen offset:{k*1024}')
    LA = 4
    for st in range(LA):
        dma(st); act(st)
    def rd(t):
        st, s = t // 4, t % 4
        base = (16 if st < 7 else 20) + s
        for ct in range(2):
            a(f'ds_read_b128 {vr(WF+(t&1)*8+ct*4,4)}, v{base} offset:{(st%7)*8192 + ct*4096}')
    XR = 208; DR = 224
    def xd():
        for ct in range(2):
            for g in range(4):
                a(f'buffer_load_dwordx2 {vr(XR+(ct*4+g)*2,2)}, v24, s[52:55], 0 offen offset:{ct*64+g*16}')
                a(f'buffer_load_dwordx2 {vr(DR+(ct*4+g)*2,2)}, v25, s[56:59], 0 offen offset:{ct*64+g*16}')
    for t in range(56):
        st, s = t // 4, t % 4
        if s == 0:
            later = min(st + LA - 1, 13) - st
            extra = 16 if st + LA - 1 > 13 else 0
            a(f's_waitcnt vmcnt({6*later + extra})')
            a('s_barrier')
            if st == 0: stamp(a, 2)
            rd(t)
            if st + LA <= 13:
                dma(st + LA); act(st + LA)
            elif st + LA == 14:
                xd()
        nxt = t + 1
        if nxt < 56 and nxt % 4 != 0:
            rd(nxt)
            a('s_waitcnt lgkmcnt(2)')
        else:
            a('s_waitcnt lgkmcnt(0)')
        for ct in range(2):
            c = vr(ACC+ct*16, 16)
            a(f'v_mfma_f32_32x32x16_bf16 {c}, {vr(WF+(t&1)*8+ct*4,4)}, {vr(ACT+((st%7)*4+s)*4,4)}, {c}')
    stamp(a, 3)
    a('s_waitcnt vmcnt(0)')
    a('s_nop 7')
    for ct in range(2):
        for g in range(4):
            x = XR+(ct*4+g)*2; d = DR+(ct*4+g)*2; c = ACC+ct*16+g*4
            for e in range(4):
                if e % 2 == 0:
                    a(f'v_lshlrev_b32 v8, 16, v{x+e//2}')
                    a(f'v_lshlrev_b32 v9, 16, v{d+e//2}')
                else:
                    a(f'v_and_b32 v8, 0xffff0000, v{x+e//2}')
                    a(f'v_and_b32 v9, 0xffff0000, v{d+e//2}')
                a('v_mul_f32 v8, v8, v9')
                a(f'v_fma_f32 v{c+e}, 2.0, v{c+e}, v8')
            a(f'buffer_store_dwordx4 {vr(c,4)}, v6, s[16:19], 0 offen offset:{ct*128+g*32}')
    stamp(a, 4); a('s_waitcnt vmcnt(0)') if STAMPS else None; stamp(a, 5); stamp(a, 6, True)
    stamp_flush(a, 8, 7, 0); stamp_flush(a, 110, 7, 2)
    a('s_endpgm')
    a.label('K3_B')
    a('s_load_dwordx2 s[44:45], s[0:1], 88')
    a('s_mul_i32 s24, s3, 120')
    a('v_lshrrev_b32 v8, 3, v2')
    a('v_add_u32 v8, s24, v8')
    a('v_mul_u32_u24 v8, 896, v8')
    a('v_bfe_u32 v9, v2, 4, 1')
    a('v_lshlrev_b32 v9, 2, v9')
    a('v_and_b32 v10, 7, v2')
    a('v_xor_b32 v9, v9, v10')
    a('v_lshl_add_u32 v12, v9, 4, v8')
    a('s_lshl_b32 s24, s21, 7')
    a('v_add_u32 v12, s24, v12')
    a('v_lshlrev_b32 v8, 2, v3')
    a('v_bfe_u32 v9, v2, 2, 2')
    a('v_add_u32 v8, v8, v9')
    a('v_lshlrev_b32 v8, 7, v8')
    a('v_bfe_u32 v9, v2, 4, 1')
    a('v_lshl_add_u32 v8, v9, 5, v8')
    a('v_and_b32 v9, 3, v2')
    a('v_lshl_add_u32 v8, v9, 3, v8')
    a('v_bfe_u32 v9, v2, 3, 1')
    a('v_lshl_add_u32 v16, v9, 6, v8')
    a('v_xor_b32 v17, 64, v16')
    a('v_add_u32 v6, 1792, v6')
    a('s_waitcnt lgkmcnt(0)')
    srd(a, 4, ptr=40, size=WS_END)
    srd(a, 8, ptr=44, size=448*896)
    srd(a, 16, ptr=42, size=2048*3584)
    a('s_mul_i32 s27, s3, 15360')
    for j in range(15):
        a(f's_add_u32 m0, s27, {j*1024}')
        a(f's_movk_i32 s29, 0')
        a(f'buffer_load_dwordx4 v12, s[8:11], 0 offen lds')
        if j < 14: a('v_add_u32 v12, 7168, v12')
    a('s_lshl_b32 s26, s22, 15')
    a(f's_add_u32 s26, s26, {WS_OF}')
    LB = 12
    def act2(u):
        if u % 4 == 0: a(f's_add_u32 s29, s26, {u*1024}')
        a(f'buffer_load_dwordx4 {vr(ACT+u*4,4)}, v4, s[4:7], s29 offen offset:{(u%4)*1024}')
    for u in range(LB): act2(u)
    a(f's_waitcnt vmcnt({LB})')
    a('s_barrier')
    stamp(a, 2)
    def rd2(u):
        h, s = u // 2, u % 2
        for ct in range(2):
            for sec in range(2):
                a(f'ds_read_b64_tr_b16 {vr(WF+(u&1)*8+ct*4+sec*2,2)}, v{16+ct} offset:{(28*h+16*s+8*sec)*128}')
    rd2(0)
    for u in range(32):
        if u + LB < 32: act2(u + LB)
        infl = min(u + LB, 31) - u
        if u < 31:
            rd2(u+1)
            a(f's_waitcnt vmcnt({infl}) lgkmcnt(4)')
        else:
            a('s_waitcnt vmcnt(0) lgkmcnt(0)')
        for ct in range(2):
            c = vr(ACC+ct*16, 16)
            a(f'v_mfma_f32_32x32x16_bf16 {c}, {vr(WF+(u&1)*8+ct*4,4)}, {vr(ACT+u*4,4)}, {c}')
    stamp(a, 3)
    a('s_nop 7'); a('s_nop 3')
    for ct in range(2):
        for g in range(4):
            a(f'buffer_store_dwordx4 {vr(ACC+ct*16+g*4,4)}, v6, s[16:19], 0 offen offset:{ct*128+g*32}')
    stamp(a, 4); a('s_waitcnt vmcnt(0)') if STAMPS else None; stamp(a, 5); stamp(a, 6, True)
    stamp_flush(a, 120, 7, 1); stamp_flush(a, 222, 7, 3)
    a.label('K3_END')
    a('s_endpgm')
    return name, 240
```

```python
import sys, os
sys.path.insert(0, os.path.dirname(__file__))
from common import *
from k1 import gen_k1
from k2 import gen_k2, NATT, NSCAN
from k3 import gen_k3
ref = open('concat_heads__ssm_conv_s5__mha_block__prompt.s.ref').read().split('\n')
hdr = []
for ln in ref:
    if ln.startswith('; @launch'):
        hdr.append('; @launch kernel=k1_proj_kernel grid=(256,1,1) block=(256,1,1) lds=122880')
        hdr.append(f'; @launch kernel=k2_attn_kernel grid=({NATT+NSCAN},1,1) block=(512,1,1) lds=65536')
        hdr.append('; @launch kernel=k3_out_kernel grid=(224,1,1) block=(256,1,1) lds=114688')
        break
    hdr.append(ln)
a = Asm()
ks = [gen_k1(a), gen_k2(a), gen_k3(a)]
out = '\n'.join(hdr) + '\n.amdgcn_target "amdgcn-amd-amdhsa--gfx950"\n.text\n' + a.text()
out += '.section .rodata,"a"\n' + ''.join(kernel_desc(n, v) for n, v in ks)
import re
def addfl(txt, fl, pat=''):
    if not fl: return txt
    return re.sub(r'(buffer_store_dword\w* [^\n]*' + pat + r'[^\n]*)', lambda m: m.group(1) + ' ' + fl, txt)
E = os.environ.get
p2 = out.index('k2_attn_kernel:'); p3 = out.index('k3_out_kernel:')
t1, t2, t3 = out[:p2], out[p2:p3], out[p3:]
t1 = addfl(t1, E('F_K1', 'sc0 sc1'))
t2 = addfl(addfl(t2, E('F_OF', ''), 's36 offen'), E('F_HF', ''), 's29 offen')
t3 = addfl(t3, E('F_OUT', ''))
out = t1 + t2 + t3
dst = sys.argv[1] if len(sys.argv) > 1 else 'concat_heads__ssm_conv_s5__mha_block__prompt.s'
open(dst, 'w').write(out)
print('wrote', dst, len(out))
```

```python
from common import *
SLOT = 40960
QSCALE = (28 ** -0.5) * 1.4426950408889634
import struct
def f2u(x): return struct.unpack('<I', struct.pack('<f', x))[0]

def xtype_read_addrs(a, dst, vl, t0, t1):
    a(f'v_and_b32 v{t0}, 31, v{vl}')
    a(f'v_lshrrev_b32 v{t1}, 5, v{vl}')
    a(f'v_bfe_u32 v{dst+3}, v{t0}, 1, 3')
    a(f'v_xor_b32 v{t1}, v{t1}, v{dst+3}')
    a(f'v_lshlrev_b32 v{t0}, 7, v{t0}')
    for s in range(4):
        a(f'v_xor_b32 v{dst+s}, {2*s}, v{t1}')
        a(f'v_lshl_add_u32 v{dst+s}, v{dst+s}, 4, v{t0}')

import os
PF = int(os.environ.get('PF', '1'))
def gemm_loop(a, nstage, per, reads, mfmas, dma, mid=None, extra=0):
    a(f's_waitcnt vmcnt({per+extra})')
    a('s_barrier')
    stamp(a, 2)
    n = reads(0, 0)
    T = 4 * nstage
    pend = list(dma(2))
    for t in range(T):
        nxt = t + 1
        if nxt < T and nxt % 4 == 0:
            a('s_waitcnt lgkmcnt(0)')
        elif nxt < T:
            n = reads(nxt, nxt & 1)
            a(f's_waitcnt lgkmcnt({n})')
        else:
            a('s_waitcnt lgkmcnt(0)')
        k = (len(pend) + (3 - t % 4)) // (4 - t % 4)
        mine, pend = pend[:k], pend[k:]
        def fill():
            if mine: mine.pop(0)()
        mfmas(t, t & 1, fill)
        while mine: mine.pop(0)()
        if nxt < T and nxt % 4 == 0:
            st = nxt // 4
            assert not pend
            infl = per if st + 1 < nstage else 0
            if st == 1: infl += extra
            a(f's_waitcnt vmcnt({infl})')
            a('s_barrier')
            n = reads(nxt, nxt & 1)
            pend = list(dma(st + 2)) if st + 2 < nstage else []

def gen_k1(a):
    name = 'k1_proj_kernel'
    kernel_header(a, name)
    a('s_cmp_ge_u32 s2, 256')
    a('s_cbranch_scc1 K1_END')
    stamp(a, 0); stamp(a, 1, True)
    a('s_load_dwordx2 s[40:41], s[0:1], 112')
    a('v_lshrrev_b32 v1, 6, v0')
    a('v_and_b32 v2, 63, v0')
    a('s_nop 0')
    a('v_readfirstlane_b32 s3, v1')
    a('s_lshr_b32 s18, s2, 3')
    a('s_and_b32 s17, s2, 3')
    a('s_lshl_b32 s20, s17, 2')
    a('s_and_b32 s21, s18, 3')
    a('s_add_u32 s20, s20, s21')
    a('s_lshr_b32 s21, s18, 2')
    a('s_lshl_b32 s16, s18, 2')
    a('s_add_u32 s16, s16, s3')
    a('s_bitcmp1_b32 s2, 2')
    a('s_cbranch_scc1 K1_A')
    VL = 2
    a('s_load_dwordx2 s[36:37], s[0:1], 72')
    a('s_load_dwordx2 s[38:39], s[0:1], 80')
    a('s_and_b32 s22, s3, 1')
    a('s_lshr_b32 s23, s3, 1')
    a('s_lshl_b32 s24, s20, 7')
    a('s_lshl_b32 s25, s3, 5')
    a('s_add_u32 s24, s24, s25')
    a('v_lshrrev_b32 v6, 3, v2')
    a('v_add_u32 v6, s24, v6')
    a('v_mul_u32_u24 v6, 896, v6')
    a('v_and_b32 v7, 7, v2')
    a('v_lshrrev_b32 v8, 4, v2')
    a('v_xor_b32 v7, v7, v8')
    a('v_lshl_add_u32 v4, v7, 4, v6')
    a('v_xor_b32 v7, 4, v7')
    a('v_lshl_add_u32 v5, v7, 4, v6')
    a('s_mul_i32 s24, s3, 384')
    a('s_mul_i32 s25, s21, 112')
    a('s_mov_b32 s26, 0x7ffffff0')
    for j in range(6):
        a(f'v_add_u32 v6, s24, v2')
        if j: a(f'v_add_u32 v6, {64*j}, v6')
        a('v_mul_u32_u24 v7, 2731, v6')
        a('v_lshrrev_b32 v7, 16, v7')
        a('v_mul_u32_u24 v8, 24, v7')
        a('v_sub_u32 v8, v6, v8')
        a('v_bfe_u32 v9, v7, 1, 1')
        a('v_lshlrev_b32 v9, 2, v9')
        a('v_xor_b32 v8, v8, v9')
        a('v_mul_u32_u24 v9, 37, v8')
        a('v_lshrrev_b32 v9, 8, v9')
        a('v_mul_u32_u24 v16, 7, v9')
        a('v_sub_u32 v16, v8, v16')
        a('v_mul_u32_u24 v7, 2688, v7')
        a('v_mul_u32_u24 v9, 896, v9')
        a('v_add3_u32 v7, v7, v9, s25')
        a(f'v_lshl_add_u32 v{10+j}, v16, 4, v7')
        a('v_cmp_lt_u32 vcc, 20, v8')
        a('v_mov_b32 v9, s26')
        a('s_nop 0')
        a(f'v_cndmask_b32 v{10+j}, v{10+j}, v9, vcc')
    xtype_read_addrs(a, 16, VL, 6, 7)
    a('s_lshl_b32 s24, s22, 13')
    for s in range(4):
        a(f'v_add_u32 v{16+s}, s24, v{16+s}')
        a(f'v_add_u32 v{20+s}, {2*SLOT}, v{16+s}')
    a('v_lshrrev_b32 v6, 5, v2')
    a('v_lshlrev_b32 v6, 3, v6')
    a('v_bfe_u32 v7, v2, 2, 2')
    a('v_add_u32 v6, v6, v7')
    a('v_mul_u32_u24 v6, 384, v6')
    a('v_add_u32 v6, 16384, v6')
    a('v_bfe_u32 v7, v2, 4, 1')
    a('v_lshlrev_b32 v7, 5, v7')
    a('v_and_b32 v8, 3, v2')
    a('v_lshl_add_u32 v7, v8, 3, v7')
    a('s_mul_i32 s24, s23, 56')
    a('v_add_u32 v7, s24, v7')
    a('v_bfe_u32 v8, v2, 3, 1')
    a('v_lshlrev_b32 v8, 6, v8')
    for sg in range(3):
        a(f'v_add_u32 v9, {112*sg}, v7')
        a('v_xor_b32 v9, v9, v8')
        a(f'v_add_u32 v{24+sg}, v9, v6')
        a(f'v_add_u32 v{27+sg}, {2*SLOT}, v{24+sg}')
    a('s_waitcnt lgkmcnt(0)')
    srd(a, 4, ptr=36, size=2048*896)
    srd(a, 8, ptr=38, size=448*2688)
    srd(a, 12, ptr=40, size=0x600000)
    ACC = 32
    XF = 128
    WF = 144
    a('s_lshl_b32 s27, s3, 12')
    a('s_mul_i32 s28, s3, 6144')
    def dma(st):
        base = (st % 3) * SLOT
        L = []
        def mkx(j):
            def f():
                a(f's_add_u32 m0, s27, {base + j*1024}')
                a(f's_mov_b32 s29, {128*st + 7168*j}')
                a(f'buffer_load_dwordx4 v{4+(j&1)}, s[4:7], s29 offen lds')
            return f
        def mkw(j):
            def f():
                a(f's_add_u32 m0, s28, {base + 16384 + j*1024}')
                a(f's_mov_b32 s29, {64*2688*st}')
                a(f'buffer_load_dwordx4 v{10+j}, s[8:11], s29 offen lds')
            return f
        for j in range(6): L.append(mkw(j))
        for j in range(4): L.append(mkx(j))
        return L
    for st in range(2):
        for f in dma(st): f()
    if PF:
        a('s_lshl_b32 s24, s16, 13')
        a(f's_add_u32 s24, s24, {2688*128}')
        a('v_lshlrev_b32 v6, 7, v2')
        a('v_add_u32 v6, s24, v6')
        a('buffer_load_dword v168, v6, s[8:11], 0 offen')
        a('s_and_b32 s24, s16, 7')
        a('s_lshl_b32 s25, s17, 3')
        a('s_add_u32 s24, s24, s25')
        a('s_mul_i32 s24, s24, 57344')
        a('s_lshr_b32 s25, s16, 3')
        a('s_lshl_b32 s25, s25, 7')
        a('s_add_u32 s24, s24, s25')
        a('s_add_u32 s24, s24, 256')
        a('s_cmp_lt_u32 s16, 40')
        a('s_cselect_b32 s24, s24, 0x7ff00000')
        a('v_mul_u32_u24 v6, 896, v2')
        a('v_add_u32 v6, s24, v6')
        a('buffer_load_dword v169, v6, s[4:7], 0 offen')
    for r in range(96):
        a(f'v_mov_b32 v{ACC+r}, 0')
    def reads(t, buf):
        st, s = t // 4, t % 4
        slot = st % 3
        off = (slot % 2) * SLOT if slot < 2 else 0
        xa = (16 if slot < 2 else 20) + s
        tr = 24 if slot < 2 else 27
        for i in range(2):
            a(f'ds_read_b128 {vr(XF+buf*8+i*4,4)}, v{xa} offset:{off+i*4096}')
        for sg in range(3):
            for sec in range(2):
                a(f'ds_read_b64_tr_b16 {vr(WF+buf*12+sg*4+sec*2,2)}, v{tr+sg} offset:{off+s*6144+sec*1536}')
        return 8
    def mfmas(t, buf, fill):
        for i in range(2):
            x = vr(XF+buf*8+i*4, 4)
            for sg in range(3):
                w = vr(WF+buf*12+sg*4, 4)
                c = vr(ACC+(i*3+sg)*16, 16)
                if sg < 2: a(f'v_mfma_f32_32x32x16_bf16 {c}, {w}, {x}, {c}')
                else:      a(f'v_mfma_f32_32x32x16_bf16 {c}, {x}, {w}, {c}')
                fill()
    gemm_loop(a, 7, 10, reads, mfmas, dma, extra=2 if PF else 0)
    stamp(a, 3)
    a('s_lshl_b32 s24, s21, 1')
    a('s_add_u32 s24, s24, s23')
    a('s_lshl_b32 s24, s24, 6')
    a('s_lshl_b32 s25, s20, 2')
    a('s_add_u32 s24, s24, s25')
    a('s_lshl_b32 s25, s22, 1')
    a('s_add_u32 s24, s24, s25')
    a('s_lshl_b32 s24, s24, 11')
    a('v_lshlrev_b32 v4, 4, v2')
    a('v_add_u32 v4, s24, v4')
    a('s_mov_b32 s30, 0')
    a('s_mov_b32 s31, -1')
    a('v_and_b32 v5, 31, v2')
    a('v_cmp_le_u32 s[32:33], 28, v5')
    a('v_cmp_eq_u32 vcc, 28, v5')
    a('v_mov_b32 v6, 0x3f803f80')
    a('v_mov_b32 v8, 0')
    a('v_cndmask_b32 v7, v8, v6, vcc')
    a(f's_mov_b32 s34, {f2u(QSCALE)}')
    a('s_nop 7')
    for i in range(2):
        for sg in range(3):
            c = ACC + (i*3+sg)*16
            P = XF + ((i*3+sg) % 2) * 8
            if sg == 0:
                for r in range(16):
                    a(f'v_mul_f32 v{c+r}, s34, v{c+r}')
            for j in range(8):
                a(f'v_cvt_pk_bf16_f32 v{P+j}, v{c+2*j}, v{c+2*j+1}')
            if sg == 0:
                a(f'v_cndmask_b32 v{P+6}, v{P+6}, v8, s[30:31]')
                a(f'v_cndmask_b32 v{P+7}, v{P+7}, v8, s[30:31]')
            elif sg == 1:
                a(f'v_cndmask_b32 v{P+6}, v{P+6}, v6, s[30:31]')
                a(f'v_cndmask_b32 v{P+7}, v{P+7}, v8, s[30:31]')
            else:
                for j in range(8):
                    a(f'v_cndmask_b32 v{P+j}, v{P+j}, v7, s[32:33]')
            a(f's_mov_b32 s29, {sg*0x200000 + i*2048}')
            a(f'buffer_store_dwordx4 {vr(P,4)}, v4, s[12:15], s29 offen')
            a(f'buffer_store_dwordx4 {vr(P+4,4)}, v4, s[12:15], s29 offen offset:1024')
            a('s_nop 1')
    stamp(a, 4); a('s_waitcnt vmcnt(0)') if STAMPS else None; stamp(a, 5); stamp(a, 6, True)
    stamp_flush(a, 8, 7, 0); stamp_flush(a, 127, 7, 1)
    a('s_endpgm')
    a.label('K1_A')
    a('s_load_dwordx2 s[36:37], s[0:1], 0')
    a('s_load_dwordx4 s[44:47], s[0:1], 24')
    a('s_load_dwordx4 s[48:51], s[0:1], 8')
    a('s_load_dwordx2 s[52:53], s[0:1], 56')
    a('s_cmp_ge_u32 s18, 28')
    a('s_cbranch_scc1 K1_END')
    a('s_and_b32 s22, s3, 1')
    a('s_lshr_b32 s23, s3, 1')
    a('s_lshl_b32 s24, s20, 7')
    a('s_lshl_b32 s25, s23, 6')
    a('s_add_u32 s24, s24, s25')
    a('s_lshl_b32 s25, s22, 4')
    a('s_add_u32 s24, s24, s25')
    a('v_lshrrev_b32 v6, 5, v2')
    a('v_lshlrev_b32 v6, 5, v6')
    a('v_bfe_u32 v7, v2, 3, 2')
    a('v_add3_u32 v6, v6, v7, s24')
    a('v_mul_u32_u24 v6, 896, v6')
    a('v_and_b32 v7, 7, v2')
    a('v_lshrrev_b32 v8, 4, v2')
    a('v_xor_b32 v7, v7, v8')
    a('v_xor_b32 v9, 4, v7')
    a('v_lshl_add_u32 v4, v7, 4, v6')
    a('v_lshl_add_u32 v5, v9, 4, v6')
    a('s_lshl_b32 s24, s21, 1')
    a('s_add_u32 s24, s24, s23')
    a('s_lshl_b32 s24, s24, 5')
    a('v_lshrrev_b32 v6, 3, v2')
    a('v_add_u32 v6, s24, v6')
    a('v_mul_u32_u24 v6, 896, v6')
    a('v_lshl_add_u32 v10, v7, 4, v6')
    a('v_lshl_add_u32 v11, v9, 4, v6')
    xtype_read_addrs(a, 16, VL, 6, 7)
    a('s_lshl_b32 s24, s22, 13')
    a('s_lshl_b32 s25, s23, 13')
    a('s_add_u32 s25, s25, 16384')
    for s in range(4):
        a(f'v_add_u32 v{24+s}, s25, v{16+s}')
        a(f'v_add_u32 v{28+s}, {2*SLOT}, v{24+s}')
        a(f'v_add_u32 v{16+s}, s24, v{16+s}')
        a(f'v_add_u32 v{20+s}, {2*SLOT}, v{16+s}')
    a('s_waitcnt lgkmcnt(0)')
    srd(a, 4, ptr=36, size=2048*896)
    a('s_cmp_eq_u32 s22, 0')
    a('s_cselect_b32 s38, s44, s46')
    a('s_cselect_b32 s39, s45, s47')
    srd(a, 8, ptr=38, size=448*896)
    srd(a, 12, ptr=40, size=WS_HF)
    srd(a, 56, ptr=48, size=896)
    srd(a, 60, ptr=50, size=896)
    srd(a, 64, ptr=52, size=896)
    ACC = 32
    XF = 96; WF = 112
    LR, LI, CR, CI = 138, 139, 140, 141
    a('s_lshl_b32 s24, s21, 1')
    a('s_add_u32 s24, s24, s23')
    a('s_lshl_b32 s25, s24, 6')
    a('v_and_b32 v128, 31, v2')
    a('v_lshlrev_b32 v128, 1, v128')
    a('v_add_u32 v128, s25, v128')
    lam_params(a, 128, 130, 56, LR, LI, coef=(CR, CI), phase=1)
    a('s_lshl_b32 s27, s3, 12')
    def dma(st):
        base = (st % 3) * SLOT
        L = []
        def mkx(j):
            def f():
                a(f's_add_u32 m0, s27, {base + j*1024}')
                a(f's_mov_b32 s29, {128*st + 3584*j}')
                a(f'buffer_load_dwordx4 v{4+(j&1)}, s[4:7], s29 offen lds')
            return f
        def mkw(j):
            def f():
                a(f's_add_u32 m0, s27, {base + 16384 + j*1024}')
                a(f's_mov_b32 s29, {128*st + 7168*j}')
                a(f'buffer_load_dwordx4 v{10+(j&1)}, s[8:11], s29 offen lds')
            return f
        for j in range(4): L.append(mkw(j))
        for j in range(4): L.append(mkx(j))
        return L
    for st in range(2):
        for f in dma(st): f()
    if PF:
        a('s_cmp_lt_u32 s16, 35')
        a('s_cselect_b32 s38, s44, s46')
        a('s_cselect_b32 s39, s45, s47')
        a('s_cselect_b32 s25, 0, 35')
        a('s_sub_u32 s25, s16, s25')
        srd(a, 48, ptr=38, size=448*896)
        a('s_mul_i32 s26, s25, 37')
        a('s_lshr_b32 s26, s26, 8')
        a('s_mul_i32 s24, s26, 7')
        a('s_sub_u32 s24, s25, s24')
        a('s_mul_i32 s24, s24, 57344')
        a('s_lshl_b32 s26, s26, 7')
        a('s_add_u32 s24, s24, s26')
        a('s_add_u32 s24, s24, 256')
        a('s_cmp_lt_u32 s16, 70')
        a('s_cselect_b32 s24, s24, 0x7ff00000')
        a('v_mul_u32_u24 v6, 896, v2')
        a('v_add_u32 v7, s24, v6')
        a('buffer_load_dword v142, v7, s[48:51], 0 offen')
        a('s_sub_u32 s25, s16, 70')
        a('s_and_b32 s24, s25, 7')
        a('s_lshl_b32 s26, s17, 3')
        a('s_add_u32 s24, s24, s26')
        a('s_mul_i32 s24, s24, 57344')
        a('s_lshr_b32 s26, s25, 3')
        a('s_lshl_b32 s26, s26, 7')
        a('s_add_u32 s24, s24, s26')
        a('s_add_u32 s24, s24, 256')
        a('s_cmp_lt_u32 s25, 40')
        a('s_cselect_b32 s24, s24, 0x7ff00000')
        a('v_add_u32 v7, s24, v6')
        a('buffer_load_dword v143, v7, s[4:7], 0 offen')
    for r in range(64):
        a(f'v_mov_b32 v{ACC+r}, 0')
    a(f's_waitcnt vmcnt({18 if PF else 16})')
    lam_params(a, 128, 130, 56, LR, LI, coef=(CR, CI), phase=2)
    def reads(t, buf):
        st, s = t // 4, t % 4
        slot = st % 3
        off = slot * SLOT if slot < 2 else 0
        xa = (16 if slot < 2 else 20) + s
        wa = (24 if slot < 2 else 28) + s
        for i in range(2):
            a(f'ds_read_b128 {vr(XF+buf*8+i*4,4)}, v{xa} offset:{off+i*4096}')
        for i in range(2):
            a(f'ds_read_b128 {vr(WF+buf*8+i*4,4)}, v{wa} offset:{off+i*4096}')
        return 4
    def mfmas(t, buf, fill):
        for i in range(2):
            for p in range(2):
                c = vr(ACC+(i*2+p)*16, 16)
                a(f'v_mfma_f32_32x32x16_bf16 {c}, {vr(XF+buf*8+i*4,4)}, {vr(WF+buf*8+p*4,4)}, {c}')
                fill()
    gemm_loop(a, 7, 8, reads, mfmas, dma, extra=2 if PF else 0)
    stamp(a, 3)
    a('s_lshl_b32 s24, s21, 1')
    a('s_add_u32 s24, s24, s23')
    a('s_lshl_b32 s25, s24, 5')
    a('v_and_b32 v4, 31, v2')
    a('v_add_u32 v4, s25, v4')
    a('v_lshlrev_b32 v5, 1, v4')
    T = 16
    a('s_lshl_b32 s25, s20, 1')
    a('s_add_u32 s25, s25, s22')
    a('s_mul_i32 s26, s25, 14')
    a('s_add_u32 s26, s26, s24')
    a('s_lshl_b32 s26, s26, 14')
    a(f's_add_u32 s26, s26, {WS_BU}')
    a('v_lshlrev_b32 v10, 4, v2')
    HR, HI = 12, 13
    a(f'v_mov_b32 v{HR}, 0')
    a(f'v_mov_b32 v{HI}, 0')
    for it in range(2):
        R = ACC + (it*2)*16; I = R + 16
        for r in range(16):
            a(f'v_mul_f32 v14, v{CI}, v{I+r}')
            a(f'v_mul_f32 v15, v{CI}, v{R+r}')
            a(f'v_fma_f32 v{R+r}, v{CR}, v{R+r}, -v14')
            a(f'v_fma_f32 v{I+r}, v{CR}, v{I+r}, v15')
            a(f'v_fma_f32 v14, v{LR}, v{HR}, v{R+r}')
            a(f'v_fma_f32 v15, v{LR}, v{HI}, v{I+r}')
            a(f'v_fma_f32 v15, v{LI}, v{HR}, v15')
            a(f'v_fma_f32 v{HR}, -v{LI}, v{HI}, v14')
            a(f'v_mov_b32 v{HI}, v15')
            if r % 4 == 3:
                q = it*4 + r//4
                a(f'buffer_store_dwordx4 {vr(R+r-3,4)}, v10, s[12:15], s26 offen offset:{(q%4)*1024}') if False else None
        for part in range(2):
            a(f's_add_u32 s29, s26, {part*8192 + it*4096}')
            for q in range(4):
                a(f'buffer_store_dwordx4 {vr(R+part*16+q*4,4)}, v10, s[12:15], s29 offen offset:{q*1024}')
    for k in range(5):
        csq(a, LR, LI, LR, LI, 14)
    a(f'v_mov_b32 v16, v{HR}')
    a(f'v_mov_b32 v17, v{HR}')
    a(f'v_mov_b32 v18, v{HI}')
    a(f'v_mov_b32 v19, v{HI}')
    a('s_nop 1')
    a('v_permlane32_swap_b32 v16, v17')
    a('v_permlane32_swap_b32 v18, v19')
    a('s_nop 1')
    a(f'v_fma_f32 v20, v{LR}, v16, v17')
    a(f'v_fma_f32 v21, v{LR}, v18, v19')
    a(f'v_fma_f32 v20, -v{LI}, v18, v20')
    a(f'v_fma_f32 v21, v{LI}, v16, v21')
    a('s_mov_b32 s30, 0')
    a('s_mov_b32 s31, -1')
    a(f'v_cndmask_b32 v20, v{HR}, v20, s[30:31]')
    a(f'v_cndmask_b32 v21, v{HI}, v21, s[30:31]')
    a('v_lshrrev_b32 v5, 5, v2')
    a('v_mul_u32_u24 v5, 448, v5')
    a('v_add_u32 v5, v5, v4')
    a('v_lshlrev_b32 v5, 3, v5')
    a('s_mul_i32 s29, s25, 7168')
    a(f's_add_u32 s29, s29, {WS_EE}')
    a('buffer_store_dwordx2 v[20:21], v5, s[12:15], s29 offen')
    stamp(a, 4); a('s_waitcnt vmcnt(0)') if STAMPS else None; stamp(a, 5); stamp(a, 6, True)
    stamp_flush(a, 136, 7, 1); stamp_flush(a, 239, 7, 3)
    a.label('K1_END')
    a('s_endpgm')
    return name, 172
```

```python
from common import *
import struct
def f2u(x): return struct.unpack('<I', struct.pack('<f', x))[0]
NATT = 256
NSCAN = 112

def set_standin(a, Q1, M, t0, t1, t2):
    a(f'v_cvt_pk_bf16_f32 v{t0}, -v{M}, -v{M}')
    a(f'v_and_b32 v{t0}, 0xffff0000, v{t0}')
    a(f'v_sub_f32 v{t1}, -v{M}, v{t0}')
    a(f'v_cvt_pk_bf16_f32 v{t1}, v{t1}, v{t1}')
    a(f'v_and_b32 v{t1}, 0xffff0000, v{t1}')
    a(f'v_add_f32 v{M}, v{t0}, v{t1}')
    a(f'v_sub_f32 v{M}, 0, v{M}')
    a(f'v_lshrrev_b32 v{t2}, 16, v{t0}')
    a(f'v_or_b32 v{t2}, v{t2}, v{t1}')
    a(f'v_cndmask_b32 v{Q1+2}, v{Q1+2}, v{t2}, s[30:31]')

def colmax(a, S, M, t0):
    a(f'v_max3_f32 v{M}, v{S}, v{S+1}, v{S+2}')
    for r in range(3, 15, 2):
        a(f'v_max3_f32 v{M}, v{M}, v{S+r}, v{S+r+1}')
    a(f'v_max_f32 v{M}, v{M}, v{S+15}')
    xhalf_max(a, M, t0)

def xhalf_max(a, M, t0):
    a(f'v_mov_b32 v{t0}, v{M}')
    a('s_nop 1')
    a(f'v_permlane32_swap_b32 v{M}, v{t0}')
    a('s_nop 1')
    a(f'v_max_f32 v{M}, v{M}, v{t0}')

def gen_k2(a):
    name = 'k2_attn_kernel'
    kernel_header(a, name)
    a(f's_cmp_ge_u32 s2, {NATT+NSCAN}')
    a('s_cbranch_scc1 K2_END')
    stamp(a, 0); stamp(a, 1, True)
    a('s_load_dwordx2 s[40:41], s[0:1], 112')
    a('v_lshrrev_b32 v1, 6, v0')
    a('v_and_b32 v2, 63, v0')
    a('s_nop 0')
    a('v_readfirstlane_b32 s3, v1')
    a('s_mov_b32 s30, 0')
    a('s_mov_b32 s31, -1')
    a(f's_cmp_ge_u32 s2, {NATT}')
    a('s_cbranch_scc1 K2_SCAN')
    a('s_setprio 2')
    a('s_and_b32 s20, s2, 7')
    a('s_lshl_b32 s20, s20, 1')
    a('s_bfe_u32 s21, s2, 0x10003')
    a('s_add_u32 s20, s20, s21')
    a('s_lshr_b32 s21, s2, 4')
    a('s_and_b32 s22, s3, 3')
    a('s_lshr_b32 s23, s3, 2')
    a('v_lshlrev_b32 v4, 4, v2')
    a('s_lshl_b32 s24, s23, 13')
    a('v_add_u32 v5, s24, v4')
    a('s_lshl_b32 s25, s20, 6')
    a('s_lshl_b32 s26, s21, 2')
    a('s_add_u32 s26, s26, s22')
    a('s_add_u32 s27, s25, s26')
    a('s_lshl_b32 s27, s27, 11')
    a('s_lshl_b32 s28, s23, 5')
    a('s_add_u32 s28, s28, s25')
    a('s_lshl_b32 s28, s28, 11')
    a(f's_add_u32 s33, s28, {WS_KF}')
    a(f's_add_u32 s34, s28, {WS_VF}')
    a('s_cmp_lt_u32 s22, 2')
    a('s_cselect_b32 s28, s33, s34')
    a('s_and_b32 s29, s22, 1')
    a('s_lshl_b32 s29, s29, 11')
    a('s_add_u32 s28, s28, s29')
    a('s_lshl_b32 s29, s22, 11')
    a('s_add_u32 s29, s29, s24')
    O, S0, S1, P, Q, KB, VB, M = 16, 32, 48, 64, 72, 80, 96, 6
    a('s_waitcnt lgkmcnt(0)')
    srd(a, 4, ptr=40, size=WS_END)
    a(f'buffer_load_dwordx4 {vr(Q,4)}, v4, s[4:7], s27 offen')
    a(f'buffer_load_dwordx4 {vr(Q+4,4)}, v4, s[4:7], s27 offen offset:1024')
    def dma(slot):
        a(f's_add_u32 m0, s29, {slot*16384}')
        a('s_nop 0')
        a('buffer_load_dwordx4 v4, s[4:7], s28 offen lds')
        a('buffer_load_dwordx4 v4, s[4:7], s28 offen offset:1024 lds')
        a('s_add_u32 s28, s28, 4096')
    dma(0); dma(1)
    a('s_lshl_b32 s36, s21, 2')
    a('s_add_u32 s36, s36, s25')
    a('s_lshl_b32 s36, s36, 11')
    a(f's_add_u32 s36, s36, {WS_KF}')
    a('s_lshl_b32 s37, s23, 21')
    a('s_add_u32 s36, s36, s37')
    a('s_lshl_b32 s37, s22, 11')
    a('s_add_u32 s36, s36, s37')
    a('v_and_b32 v7, 15, v2')
    a('v_lshlrev_b32 v7, 7, v7')
    a('buffer_load_dword v112, v7, s[4:7], s36 offen')
    dma(2)
    for r in range(16): a(f'v_mov_b32 v{O+r}, 0')
    def rdK(tile, buf):
        off = ((tile >> 1) & 3) * 16384 + (tile & 1) * 2048
        a(f'ds_read_b128 {vr(KB+buf*8,4)}, v5 offset:{off}')
        a(f'ds_read_b128 {vr(KB+buf*8+4,4)}, v5 offset:{off+1024}')
    def rdV(tile, buf):
        off = ((tile >> 1) & 3) * 16384 + 4096 + (tile & 1) * 2048
        a(f'ds_read_b128 {vr(VB+buf*8,4)}, v5 offset:{off}')
        a(f'ds_read_b128 {vr(VB+buf*8+4,4)}, v5 offset:{off+1024}')
    def qk(S, kb, which):
        if which == 0: a(f'v_mfma_f32_32x32x16_bf16 {vr(S,16)}, {vr(kb,4)}, {vr(Q,4)}, 0')
        else:          a(f'v_mfma_f32_32x32x16_bf16 {vr(S,16)}, {vr(kb+4,4)}, {vr(Q+4,4)}, {vr(S,16)}')
    a('s_waitcnt vmcnt(5)')
    a('s_barrier')
    stamp(a, 2)
    rdK(0, 0); rdK(1, 1); rdV(0, 0)
    a('s_waitcnt lgkmcnt(4)')
    qk(S0, KB, 0); qk(S0, KB, 1)
    a('s_nop 7'); a('s_nop 3')
    colmax(a, S0, M, 7)
    set_standin(a, Q+4, M, 7, 8, 9)
    a('s_nop 1')
    qk(S0, KB, 0); qk(S0, KB, 1)
    for j in range(4):
        a(f'v_mov_b32 v{P+4+j}, 0')
        a(f'v_mov_b32 v{VB+12+j}, 0')
    a('s_mov_b32 s35, 4')
    a.label('K2_LOOP')
    def ex(S, r): a(f'v_exp_f32 v{S+r}, v{S+r}')
    def cv(S, j): a(f'v_cvt_pk_bf16_f32 v{P+j}, v{S+2*j}, v{S+2*j+1}')
    for t in range(8):
        Sc = S0 if t % 2 == 0 else S1
        Sn = S1 if t % 2 == 0 else S0
        kn = KB + ((t+1) & 1) * 8
        vc = VB + (t & 1) * 8
        vp = VB + ((t+1) & 1) * 8
        if t % 2 == 0:
            a('s_waitcnt vmcnt(2) lgkmcnt(0)')
            a('s_barrier')
        else:
            a('s_waitcnt lgkmcnt(0)')
        rdK(t+2, t & 1)
        a(f'v_mfma_f32_32x32x16_bf16 {vr(O,16)}, {vr(vp+4,4)}, {vr(P+4,4)}, {vr(O,16)}')
        for r in range(4): ex(Sc, r)
        rdV(t+1, (t+1) & 1)
        cv(Sc, 0); cv(Sc, 1)
        qk(Sn, kn, 0)
        for r in range(4, 8): ex(Sc, r)
        if t % 2 == 0: dma(((t >> 1) + 3) & 3)
        cv(Sc, 2); cv(Sc, 3)
        qk(Sn, kn, 1)
        for r in range(8, 12): ex(Sc, r)
        cv(Sc, 4); cv(Sc, 5)
        a(f'v_mfma_f32_32x32x16_bf16 {vr(O,16)}, {vr(vc,4)}, {vr(P,4)}, {vr(O,16)}')
        for r in range(12, 16): ex(Sc, r)
        cv(Sc, 6); cv(Sc, 7)
    a('s_sub_u32 s35, s35, 1')
    a('s_cmp_lg_u32 s35, 0')
    a('s_cbranch_scc1 K2_LOOP')
    a('s_nop 0')
    a(f'v_mfma_f32_32x32x16_bf16 {vr(O,16)}, {vr(VB+12,4)}, {vr(P+4,4)}, {vr(O,16)}')
    stamp(a, 3)
    a('s_nop 7'); a('s_nop 3')
    a(f'v_mov_b32 v7, 0x4e800000')
    a(f'v_cmp_nlt_f32 vcc, v{O+12}, v7')
    a('s_nop 1')
    a('s_and_b64 vcc, vcc, s[30:31]')
    a('s_cbranch_vccz K2_MERGE')
    a(f'v_mov_b32 v8, 0xff800000')
    a('s_mov_b32 s35, 32')
    a('s_mov_b32 s36, s33')
    a.label('K2_FB1')
    a(f'buffer_load_dwordx4 {vr(KB,4)}, v4, s[4:7], s36 offen')
    a(f'buffer_load_dwordx4 {vr(KB+4,4)}, v4, s[4:7], s36 offen offset:1024')
    a('s_waitcnt vmcnt(0)')
    qk(S0, KB, 0); qk(S0, KB, 1)
    a('s_nop 7'); a('s_nop 3')
    for r in range(0, 16, 2):
        a(f'v_max3_f32 v8, v8, v{S0+r}, v{S0+r+1}')
    a('s_add_u32 s36, s36, 2048')
    a('s_sub_u32 s35, s35, 1')
    a('s_cmp_lg_u32 s35, 0')
    a('s_cbranch_scc1 K2_FB1')
    xhalf_max(a, 8, 7)
    a(f'v_add_f32 v{M}, v{M}, v8')
    set_standin(a, Q+4, M, 7, 8, 9)
    for r in range(16): a(f'v_mov_b32 v{O+r}, 0')
    a('s_mov_b32 s35, 32')
    a('s_mov_b32 s36, s33')
    a('s_mov_b32 s37, s34')
    a.label('K2_FB2')
    a(f'buffer_load_dwordx4 {vr(KB,4)}, v4, s[4:7], s36 offen')
    a(f'buffer_load_dwordx4 {vr(KB+4,4)}, v4, s[4:7], s36 offen offset:1024')
    a(f'buffer_load_dwordx4 {vr(VB,4)}, v4, s[4:7], s37 offen')
    a(f'buffer_load_dwordx4 {vr(VB+4,4)}, v4, s[4:7], s37 offen offset:1024')
    a('s_waitcnt vmcnt(0)')
    qk(S0, KB, 0); qk(S0, KB, 1)
    a('s_nop 7'); a('s_nop 3')
    for r in range(16): a(f'v_exp_f32 v{S0+r}, v{S0+r}')
    a('s_nop 1')
    for j in range(8): a(f'v_cvt_pk_bf16_f32 v{P+j}, v{S0+2*j}, v{S0+2*j+1}')
    a('s_nop 1')
    a(f'v_mfma_f32_32x32x16_bf16 {vr(O,16)}, {vr(VB,4)}, {vr(P,4)}, {vr(O,16)}')
    a(f'v_mfma_f32_32x32x16_bf16 {vr(O,16)}, {vr(VB+4,4)}, {vr(P+4,4)}, {vr(O,16)}')
    a('s_add_u32 s36, s36, 2048')
    a('s_add_u32 s37, s37, 2048')
    a('s_sub_u32 s35, s35, 1')
    a('s_cmp_lg_u32 s35, 0')
    a('s_cbranch_scc1 K2_FB2')
    a('s_nop 7'); a('s_nop 3')
    a.label('K2_MERGE')
    a('s_waitcnt vmcnt(0) lgkmcnt(0)')
    a('s_barrier')
    a('s_mul_i32 s36, s22, 5120')
    a('v_add_u32 v8, s36, v4')
    a('v_lshlrev_b32 v9, 2, v2')
    a('v_add_u32 v9, s36, v9')
    a('s_cmp_eq_u32 s23, 0')
    a('s_cbranch_scc1 K2_M0')
    for q in range(4):
        a(f'ds_write_b128 v8, {vr(O+4*q,4)} offset:{q*1024}')
    a(f'ds_write_b32 v9, v{M} offset:4096')
    a('s_waitcnt lgkmcnt(0)')
    a('s_barrier')
    a('s_endpgm')
    a.label('K2_M0')
    a('s_barrier')
    for q in range(4):
        a(f'ds_read_b128 {vr(S0+4*q,4)}, v8 offset:{q*1024}')
    a(f'ds_read_b32 v10, v9 offset:4096')
    a('s_waitcnt lgkmcnt(0)')
    a(f'v_max_f32 v11, v{M}, v10')
    a(f'v_sub_f32 v12, v{M}, v11')
    a(f'v_sub_f32 v13, v10, v11')
    a('v_exp_f32 v12, v12')
    a('v_exp_f32 v13, v13')
    a('s_nop 1')
    a(f'v_mul_f32 v14, v12, v{O+12}')
    a(f'v_fmac_f32 v14, v13, v{S0+12}')
    a('v_mov_b32 v15, v14')
    a('s_nop 1')
    a('v_permlane32_swap_b32 v15, v14')
    a('s_nop 1')
    a('v_rcp_f32 v14, v14')
    a('s_nop 1')
    a('v_mul_f32 v12, v12, v14')
    a('v_mul_f32 v13, v13, v14')
    for r in range(16):
        a(f'v_mul_f32 v{O+r}, v12, v{O+r}')
        a(f'v_fmac_f32 v{O+r}, v13, v{S0+r}')
    for j in range(8): a(f'v_cvt_pk_bf16_f32 v{P+j}, v{O+2*j}, v{O+2*j+1}')
    a('v_mov_b32 v7, 0')
    a(f'v_cndmask_b32 v{P+6}, v{P+6}, v7, s[30:31]')
    a(f'v_cndmask_b32 v{P+7}, v{P+7}, v7, s[30:31]')
    a('s_lshl_b32 s36, s26, 4')
    a('s_add_u32 s36, s36, s20')
    a('s_lshl_b32 s36, s36, 11')
    a(f's_add_u32 s36, s36, {WS_OF}')
    a(f'buffer_store_dwordx4 {vr(P,4)}, v4, s[4:7], s36 offen')
    a(f'buffer_store_dwordx4 {vr(P+4,4)}, v4, s[4:7], s36 offen offset:1024')
    stamp(a, 4); a('s_waitcnt vmcnt(0)') if STAMPS else None; stamp(a, 5); stamp(a, 6, True)
    stamp_flush(a, 8, 7, 0); stamp_flush(a, 250, 7, 2)
    a('s_endpgm')
    if int(os.environ.get('PF3', '1')):
        a.label('K2_PF')
        a('s_load_dwordx4 s[44:47], s[0:1], 40')
        a('s_load_dwordx2 s[48:49], s[0:1], 88')
        a(f's_sub_u32 s19, s2, {NATT}')
        a('s_lshr_b32 s19, s19, 3')
        a('s_lshl_b32 s19, s19, 2')
        a('s_add_u32 s19, s19, s3')
        a('s_sub_u32 s19, s19, 4')
        a('s_lshl_b32 s19, s19, 13')
        a('v_lshlrev_b32 v4, 7, v2')
        a('v_add_u32 v4, s19, v4')
        a('s_waitcnt lgkmcnt(0)')
        srd(a, 4, ptr=48, size=448*896)
        srd(a, 8, ptr=44, size=448*896)
        srd(a, 12, ptr=46, size=448*896)
        a('buffer_load_dword v5, v4, s[8:11], 0 offen')
        a('buffer_load_dword v6, v4, s[12:15], 0 offen')
        a('buffer_load_dword v7, v4, s[4:7], 0 offen')
        a('s_waitcnt vmcnt(0)')
        a('s_endpgm')
    a.label('K2_SCAN')
    a('s_cmp_ge_u32 s3, 4')
    a('s_cbranch_scc1 ' + ('K2_PF' if int(os.environ.get('PF3', '1')) else 'K2_END'))
    a(f's_setprio {os.environ.get("SCANPRIO", "0")}')
    a('s_load_dwordx4 s[48:51], s[0:1], 8')
    a('s_load_dwordx2 s[52:53], s[0:1], 56')
    a(f's_sub_u32 s19, s2, {NATT}')
    a('s_and_b32 s20, s19, 7')
    a('s_lshl_b32 s20, s20, 2')
    a('s_add_u32 s20, s20, s3')
    a('s_lshr_b32 s21, s19, 3')
    a('s_mul_i32 s26, s20, 14')
    a('s_add_u32 s26, s26, s21')
    a('s_lshl_b32 s26, s26, 14')
    a(f's_add_u32 s26, s26, {WS_BU}')
    a('v_lshlrev_b32 v10, 4, v2')
    a('s_lshl_b32 s25, s21, 5')
    a('v_and_b32 v4, 31, v2')
    a('v_add_u32 v4, s25, v4')
    a('v_lshlrev_b32 v5, 1, v4')
    a('v_lshrrev_b32 v3, 5, v2')
    BU, EE = 32, 96
    a('s_waitcnt lgkmcnt(0)')
    srd(a, 4, ptr=40, size=WS_END)
    srd(a, 8, ptr=40, size=32*7168, add=WS_EE)
    srd(a, 56, ptr=48, size=896)
    srd(a, 60, ptr=50, size=896)
    srd(a, 64, ptr=52, size=896)
    a('s_sub_u32 s24, s20, 1')
    a('v_sub_u32 v11, s24, v3')
    a('s_movk_i32 s23, 7168')
    a('v_mul_lo_u32 v11, v11, s23')
    a('v_lshl_add_u32 v11, v4, 3, v11')
    a('v_add_u32 v11, 3584, v11')
    for i in range(16):
        a(f'buffer_load_dwordx2 {vr(EE+2*i,2)}, v11, s[8:11], 0 offen')
        if i < 15: a(f'v_subrev_u32 v11, 14336, v11')
    a('s_mul_i32 s24, s20, 7168')
    a('v_lshlrev_b32 v12, 3, v4')
    a('buffer_load_dwordx2 v[14:15], v12, s[8:11], s24 offen')
    for part in range(2):
        for q in range(8):
            a(f's_add_u32 s29, s26, {part*8192 + (q//4)*4096}')
            a(f'buffer_load_dwordx4 {vr(BU+part*32+q*4,4)}, v10, s[4:7], s29 offen offset:{(q%4)*1024}')
    LR, LI = 6, 7
    lam_params(a, 5, 16, 56, LR, LI)
    stamp(a, 2)
    a(f'v_mov_b32 v8, v{LR}')
    a(f'v_mov_b32 v9, v{LI}')
    for k in range(5): csq(a, 8, 9, 8, 9, 16)
    csq(a, 12, 13, 8, 9, 16)
    csq(a, 24, 25, 12, 13, 16)
    a(f'v_mov_b32 v26, v{EE+30}')
    a(f'v_mov_b32 v27, v{EE+31}')
    for i in range(14, -1, -1):
        a(f'v_fma_f32 v16, v24, v26, v{EE+2*i}')
        a(f'v_fma_f32 v17, v24, v27, v{EE+2*i+1}')
        a(f'v_fma_f32 v16, -v25, v27, v16')
        a(f'v_fma_f32 v27, v25, v26, v17')
        a(f'v_mov_b32 v26, v16')
    a('v_mov_b32 v16, v26')
    a('v_mov_b32 v17, v27')
    a('s_nop 1')
    a('v_permlane32_swap_b32 v26, v16')
    a('v_permlane32_swap_b32 v27, v17')
    a('s_nop 1')
    a('v_fma_f32 v26, v12, v16, v26')
    a('v_fma_f32 v27, v12, v17, v27')
    a('v_fma_f32 v26, -v13, v17, v26')
    a('v_fma_f32 v27, v13, v16, v27')
    a('v_fma_f32 v16, v8, v26, v14')
    a('v_fma_f32 v17, v8, v27, v15')
    a('v_fma_f32 v16, -v9, v27, v16')
    a('v_fma_f32 v17, v9, v26, v17')
    a('v_cndmask_b32 v26, v26, v16, s[30:31]')
    a('v_cndmask_b32 v27, v27, v17, s[30:31]')
    R, I = BU, BU + 32
    pr, pi = 26, 27
    for t in range(32):
        a(f'v_fma_f32 v{R+t}, v{LR}, v{pr}, v{R+t}')
        a(f'v_fma_f32 v{I+t}, v{LR}, v{pi}, v{I+t}')
        a(f'v_fma_f32 v{R+t}, -v{LI}, v{pi}, v{R+t}')
        a(f'v_fma_f32 v{I+t}, v{LI}, v{pr}, v{I+t}')
        pr, pi = R+t, I+t
    stamp(a, 3)
    a('s_mul_i32 s24, s3, 6144')
    a('v_and_b32 v8, 31, v2')
    a('v_mul_u32_u24 v8, 192, v8')
    a('v_lshl_add_u32 v8, v3, 6, v8')
    a('v_add_u32 v8, s24, v8')
    a('v_lshlrev_b32 v9, 3, v3')
    a('v_bfe_u32 v12, v2, 2, 2')
    a('v_add_u32 v9, v9, v12')
    a('v_mul_u32_u24 v9, 192, v9')
    a('v_bfe_u32 v12, v2, 4, 1')
    a('v_lshl_add_u32 v9, v12, 5, v9')
    a('v_and_b32 v12, 3, v2')
    a('v_lshl_add_u32 v9, v12, 3, v9')
    a('v_add_u32 v9, s24, v9')
    a('s_mul_i32 s27, s20, 112')
    a('s_lshl_b32 s28, s21, 1')
    a('s_add_u32 s27, s27, s28')
    a('s_lshl_b32 s27, s27, 10')
    a(f's_add_u32 s27, s27, {WS_HF}')
    PK, FR = 96, 112
    for part in range(2):
        B = BU + part*32
        ng = '-' if part else ''
        for j in range(16):
            a(f'v_cvt_pk_bf16_f32 v{PK+j}, {ng}v{B+2*j}, {ng}v{B+2*j+1}')
        if part: a('s_waitcnt lgkmcnt(0)')
        for q in range(4):
            a(f'ds_write_b128 v8, {vr(PK+q*4,4)} offset:{q*16}')
        a('s_waitcnt lgkmcnt(0)')
        if part: a('s_nop 0')
        F = FR if part == 0 else BU
        for hp in range(2):
            for e in range(2):
                for sec in range(2):
                    a(f'ds_read_b64_tr_b16 {vr(F+(hp*2+e)*4+sec*2,2)}, v9 offset:{(16*e+4*sec)*192 + hp*64}')
        a('s_waitcnt lgkmcnt(0)')
        for hp in range(2):
            for e in range(2):
                a(f's_add_u32 s29, s27, {(hp*56 + part*28 + e)*1024}')
                a(f'buffer_store_dwordx4 {vr(F+(hp*2+e)*4,4)}, v10, s[4:7], s29 offen')
    stamp(a, 4); a('s_waitcnt vmcnt(0)') if STAMPS else None; stamp(a, 5); stamp(a, 6, True)
    stamp_flush(a, NATT+8, 7, 1); stamp_flush(a, NATT+110, 7, 3)
    a.label('K2_END')
    a('s_endpgm')
    return name, 128
```

```python
from common import *
import struct
def f2u(x): return struct.unpack('<I', struct.pack('<f', x))[0]
import os
PF3 = int(os.environ.get('PF3', '2'))
NATT = 256
NSCAN = 112

def set_standin(a, Q1, M, t0, t1, t2):
    a(f'v_cvt_pk_bf16_f32 v{t0}, -v{M}, -v{M}')
    a(f'v_and_b32 v{t0}, 0xffff0000, v{t0}')
    a(f'v_sub_f32 v{t1}, -v{M}, v{t0}')
    a(f'v_cvt_pk_bf16_f32 v{t1}, v{t1}, v{t1}')
    a(f'v_and_b32 v{t1}, 0xffff0000, v{t1}')
    a(f'v_add_f32 v{M}, v{t0}, v{t1}')
    a(f'v_sub_f32 v{M}, 0, v{M}')
    a(f'v_lshrrev_b32 v{t2}, 16, v{t0}')
    a(f'v_or_b32 v{t2}, v{t2}, v{t1}')
    a(f'v_cndmask_b32 v{Q1+2}, v{Q1+2}, v{t2}, s[30:31]')

def colmax(a, S, M, t0):
    a(f'v_max3_f32 v{M}, v{S}, v{S+1}, v{S+2}')
    for r in range(3, 15, 2):
        a(f'v_max3_f32 v{M}, v{M}, v{S+r}, v{S+r+1}')
    a(f'v_max_f32 v{M}, v{M}, v{S+15}')
    xhalf_max(a, M, t0)

def xhalf_max(a, M, t0):
    a(f'v_mov_b32 v{t0}, v{M}')
    a('s_nop 1')
    a(f'v_permlane32_swap_b32 v{M}, v{t0}')
    a('s_nop 1')
    a(f'v_max_f32 v{M}, v{M}, v{t0}')

def gen_k2(a):
    name = 'k2_attn_kernel'
    kernel_header(a, name)
    a(f's_cmp_ge_u32 s2, {NATT+NSCAN}')
    a('s_cbranch_scc1 K2_END')
    stamp(a, 0); stamp(a, 1, True)
    a('s_load_dwordx2 s[40:41], s[0:1], 112')
    a('v_lshrrev_b32 v1, 6, v0')
    a('v_and_b32 v2, 63, v0')
    a('s_nop 0')
    a('v_readfirstlane_b32 s3, v1')
    a('s_mov_b32 s30, 0')
    a('s_mov_b32 s31, -1')
    a(f's_cmp_ge_u32 s2, {NATT}')
    a('s_cbranch_scc1 K2_SCAN')
    a('s_setprio 2')
    a('s_and_b32 s20, s2, 7')
    a('s_lshl_b32 s20, s20, 1')
    a('s_bfe_u32 s21, s2, 0x10003')
    a('s_add_u32 s20, s20, s21')
    a('s_lshr_b32 s21, s2, 4')
    a('s_and_b32 s22, s3, 3')
    a('s_lshr_b32 s23, s3, 2')
    a('v_lshlrev_b32 v4, 4, v2')
    a('s_lshl_b32 s24, s23, 13')
    a('v_add_u32 v5, s24, v4')
    a('s_lshl_b32 s25, s20, 6')
    a('s_lshl_b32 s26, s21, 2')
    a('s_add_u32 s26, s26, s22')
    a('s_add_u32 s27, s25, s26')
    a('s_lshl_b32 s27, s27, 11')
    a('s_lshl_b32 s28, s23, 5')
    a('s_add_u32 s28, s28, s25')
    a('s_lshl_b32 s28, s28, 11')
    a(f's_add_u32 s33, s28, {WS_KF}')
    a(f's_add_u32 s34, s28, {WS_VF}')
    a('s_cmp_lt_u32 s22, 2')
    a('s_cselect_b32 s28, s33, s34')
    a('s_and_b32 s29, s22, 1')
    a('s_lshl_b32 s29, s29, 11')
    a('s_add_u32 s28, s28, s29')
    a('s_lshl_b32 s29, s22, 11')
    a('s_add_u32 s29, s29, s24')
    O, S0, S1, P, Q, KB, VB, M = 16, 32, 48, 64, 72, 80, 96, 6
    a('s_waitcnt lgkmcnt(0)')
    srd(a, 4, ptr=40, size=WS_END)
    a(f'buffer_load_dwordx4 {vr(Q,4)}, v4, s[4:7], s27 offen')
    a(f'buffer_load_dwordx4 {vr(Q+4,4)}, v4, s[4:7], s27 offen offset:1024')
    def dma(slot):
        a(f's_add_u32 m0, s29, {slot*16384}')
        a('s_nop 0')
        a('buffer_load_dwordx4 v4, s[4:7], s28 offen lds')
        a('buffer_load_dwordx4 v4, s[4:7], s28 offen offset:1024 lds')
        a('s_add_u32 s28, s28, 4096')
    dma(0); dma(1)
    a('s_lshl_b32 s36, s21, 2')
    a('s_add_u32 s36, s36, s25')
    a('s_lshl_b32 s36, s36, 11')
    a(f's_add_u32 s36, s36, {WS_KF}')
    a('s_lshl_b32 s37, s23, 21')
    a('s_add_u32 s36, s36, s37')
    a('s_lshl_b32 s37, s22, 11')
    a('s_add_u32 s36, s36, s37')
    a('v_and_b32 v7, 15, v2')
    a('v_lshlrev_b32 v7, 7, v7')
    a('buffer_load_dword v112, v7, s[4:7], s36 offen')
    dma(2)
    for r in range(16): a(f'v_mov_b32 v{O+r}, 0')
    def rdK(tile, buf):
        off = ((tile >> 1) & 3) * 16384 + (tile & 1) * 2048
        a(f'ds_read_b128 {vr(KB+buf*8,4)}, v5 offset:{off}')
        a(f'ds_read_b128 {vr(KB+buf*8+4,4)}, v5 offset:{off+1024}')
    def rdV(tile, buf):
        off = ((tile >> 1) & 3) * 16384 + 4096 + (tile & 1) * 2048
        a(f'ds_read_b128 {vr(VB+buf*8,4)}, v5 offset:{off}')
        a(f'ds_read_b128 {vr(VB+buf*8+4,4)}, v5 offset:{off+1024}')
    def qk(S, kb, which):
        if which == 0: a(f'v_mfma_f32_32x32x16_bf16 {vr(S,16)}, {vr(kb,4)}, {vr(Q,4)}, 0')
        else:          a(f'v_mfma_f32_32x32x16_bf16 {vr(S,16)}, {vr(kb+4,4)}, {vr(Q+4,4)}, {vr(S,16)}')
    a('s_waitcnt vmcnt(5)')
    a('s_barrier')
    stamp(a, 2)
    rdK(0, 0); rdK(1, 1); rdV(0, 0)
    a('s_waitcnt lgkmcnt(4)')
    qk(S0, KB, 0); qk(S0, KB, 1)
    a('s_nop 7'); a('s_nop 3')
    colmax(a, S0, M, 7)
    set_standin(a, Q+4, M, 7, 8, 9)
    a('s_nop 1')
    qk(S0, KB, 0); qk(S0, KB, 1)
    for j in range(4):
        a(f'v_mov_b32 v{P+4+j}, 0')
        a(f'v_mov_b32 v{VB+12+j}, 0')
    a('s_mov_b32 s35, 4')
    a.label('K2_LOOP')
    def ex(S, r): a(f'v_exp_f32 v{S+r}, v{S+r}')
    def cv(S, j): a(f'v_cvt_pk_bf16_f32 v{P+j}, v{S+2*j}, v{S+2*j+1}')
    for t in range(8):
        Sc = S0 if t % 2 == 0 else S1
        Sn = S1 if t % 2 == 0 else S0
        kn = KB + ((t+1) & 1) * 8
        vc = VB + (t & 1) * 8
        vp = VB + ((t+1) & 1) * 8
        if t % 2 == 0:
            a('s_waitcnt vmcnt(2) lgkmcnt(0)')
            a('s_barrier')
        else:
            a('s_waitcnt lgkmcnt(0)')
        rdK(t+2, t & 1)
        a(f'v_mfma_f32_32x32x16_bf16 {vr(O,16)}, {vr(vp+4,4)}, {vr(P+4,4)}, {vr(O,16)}')
        for r in range(4): ex(Sc, r)
        rdV(t+1, (t+1) & 1)
        cv(Sc, 0); cv(Sc, 1)
        qk(Sn, kn, 0)
        for r in range(4, 8): ex(Sc, r)
        if t % 2 == 0: dma(((t >> 1) + 3) & 3)
        cv(Sc, 2); cv(Sc, 3)
        qk(Sn, kn, 1)
        for r in range(8, 12): ex(Sc, r)
        cv(Sc, 4); cv(Sc, 5)
        a(f'v_mfma_f32_32x32x16_bf16 {vr(O,16)}, {vr(vc,4)}, {vr(P,4)}, {vr(O,16)}')
        for r in range(12, 16): ex(Sc, r)
        cv(Sc, 6); cv(Sc, 7)
    a('s_sub_u32 s35, s35, 1')
    a('s_cmp_lg_u32 s35, 0')
    a('s_cbranch_scc1 K2_LOOP')
    a('s_nop 0')
    a(f'v_mfma_f32_32x32x16_bf16 {vr(O,16)}, {vr(VB+12,4)}, {vr(P+4,4)}, {vr(O,16)}')
    stamp(a, 3)
    a('s_nop 7'); a('s_nop 3')
    a(f'v_mov_b32 v7, 0x4e800000')
    a(f'v_cmp_nlt_f32 vcc, v{O+12}, v7')
    a('s_nop 1')
    a('s_and_b64 vcc, vcc, s[30:31]')
    a('s_cbranch_vccz K2_MERGE')
    a(f'v_mov_b32 v8, 0xff800000')
    a('s_mov_b32 s35, 32')
    a('s_mov_b32 s36, s33')
    a.label('K2_FB1')
    a(f'buffer_load_dwordx4 {vr(KB,4)}, v4, s[4:7], s36 offen')
    a(f'buffer_load_dwordx4 {vr(KB+4,4)}, v4, s[4:7], s36 offen offset:1024')
    a('s_waitcnt vmcnt(0)')
    qk(S0, KB, 0); qk(S0, KB, 1)
    a('s_nop 7'); a('s_nop 3')
    for r in range(0, 16, 2):
        a(f'v_max3_f32 v8, v8, v{S0+r}, v{S0+r+1}')
    a('s_add_u32 s36, s36, 2048')
    a('s_sub_u32 s35, s35, 1')
    a('s_cmp_lg_u32 s35, 0')
    a('s_cbranch_scc1 K2_FB1')
    xhalf_max(a, 8, 7)
    a(f'v_add_f32 v{M}, v{M}, v8')
    set_standin(a, Q+4, M, 7, 8, 9)
    for r in range(16): a(f'v_mov_b32 v{O+r}, 0')
    a('s_mov_b32 s35, 32')
    a('s_mov_b32 s36, s33')
    a('s_mov_b32 s37, s34')
    a.label('K2_FB2')
    a(f'buffer_load_dwordx4 {vr(KB,4)}, v4, s[4:7], s36 offen')
    a(f'buffer_load_dwordx4 {vr(KB+4,4)}, v4, s[4:7], s36 offen offset:1024')
    a(f'buffer_load_dwordx4 {vr(VB,4)}, v4, s[4:7], s37 offen')
    a(f'buffer_load_dwordx4 {vr(VB+4,4)}, v4, s[4:7], s37 offen offset:1024')
    a('s_waitcnt vmcnt(0)')
    qk(S0, KB, 0); qk(S0, KB, 1)
    a('s_nop 7'); a('s_nop 3')
    for r in range(16): a(f'v_exp_f32 v{S0+r}, v{S0+r}')
    a('s_nop 1')
    for j in range(8): a(f'v_cvt_pk_bf16_f32 v{P+j}, v{S0+2*j}, v{S0+2*j+1}')
    a('s_nop 1')
    a(f'v_mfma_f32_32x32x16_bf16 {vr(O,16)}, {vr(VB,4)}, {vr(P,4)}, {vr(O,16)}')
    a(f'v_mfma_f32_32x32x16_bf16 {vr(O,16)}, {vr(VB+4,4)}, {vr(P+4,4)}, {vr(O,16)}')
    a('s_add_u32 s36, s36, 2048')
    a('s_add_u32 s37, s37, 2048')
    a('s_sub_u32 s35, s35, 1')
    a('s_cmp_lg_u32 s35, 0')
    a('s_cbranch_scc1 K2_FB2')
    a('s_nop 7'); a('s_nop 3')
    a.label('K2_MERGE')
    a('s_waitcnt vmcnt(0) lgkmcnt(0)')
    a('s_barrier')
    a('s_mul_i32 s36, s22, 5120')
    a('v_add_u32 v8, s36, v4')
    a('v_lshlrev_b32 v9, 2, v2')
    a('v_add_u32 v9, s36, v9')
    a('s_cmp_eq_u32 s23, 0')
    a('s_cbranch_scc1 K2_M0')
    for q in range(4):
        a(f'ds_write_b128 v8, {vr(O+4*q,4)} offset:{q*1024}')
    a(f'ds_write_b32 v9, v{M} offset:4096')
    a('s_waitcnt lgkmcnt(0)')
    a('s_barrier')
    a('s_endpgm')
    a.label('K2_M0')
    a('s_barrier')
    for q in range(4):
        a(f'ds_read_b128 {vr(S0+4*q,4)}, v8 offset:{q*1024}')
    a(f'ds_read_b32 v10, v9 offset:4096')
    a('s_waitcnt lgkmcnt(0)')
    a(f'v_max_f32 v11, v{M}, v10')
    a(f'v_sub_f32 v12, v{M}, v11')
    a(f'v_sub_f32 v13, v10, v11')
    a('v_exp_f32 v12, v12')
    a('v_exp_f32 v13, v13')
    a('s_nop 1')
    a(f'v_mul_f32 v14, v12, v{O+12}')
    a(f'v_fmac_f32 v14, v13, v{S0+12}')
    a('v_mov_b32 v15, v14')
    a('s_nop 1')
    a('v_permlane32_swap_b32 v15, v14')
    a('s_nop 1')
    a('v_rcp_f32 v14, v14')
    a('s_nop 1')
    a('v_mul_f32 v12, v12, v14')
    a('v_mul_f32 v13, v13, v14')
    for r in range(16):
        a(f'v_mul_f32 v{O+r}, v12, v{O+r}')
        a(f'v_fmac_f32 v{O+r}, v13, v{S0+r}')
    for j in range(8): a(f'v_cvt_pk_bf16_f32 v{P+j}, v{O+2*j}, v{O+2*j+1}')
    a('v_mov_b32 v7, 0')
    a(f'v_cndmask_b32 v{P+6}, v{P+6}, v7, s[30:31]')
    a(f'v_cndmask_b32 v{P+7}, v{P+7}, v7, s[30:31]')
    a('s_lshl_b32 s36, s26, 4')
    a('s_add_u32 s36, s36, s20')
    a('s_lshl_b32 s36, s36, 11')
    a(f's_add_u32 s36, s36, {WS_OF}')
    a(f'buffer_store_dwordx4 {vr(P,4)}, v4, s[4:7], s36 offen')
    a(f'buffer_store_dwordx4 {vr(P+4,4)}, v4, s[4:7], s36 offen offset:1024')
    stamp(a, 4); a('s_waitcnt vmcnt(0)') if STAMPS else None; stamp(a, 5); stamp(a, 6, True)
    stamp_flush(a, 8, 7, 0); stamp_flush(a, 250, 7, 2)
    a('s_endpgm')
    if PF3 == 1:
        a.label('K2_PF')
        a('s_load_dwordx4 s[44:47], s[0:1], 40')
        a('s_load_dwordx2 s[48:49], s[0:1], 88')
        a(f's_sub_u32 s19, s2, {NATT}')
        a('s_lshr_b32 s19, s19, 3')
        a('s_lshl_b32 s19, s19, 2')
        a('s_add_u32 s19, s19, s3')
        a('s_sub_u32 s19, s19, 4')
        a('s_lshl_b32 s19, s19, 13')
        a('v_lshlrev_b32 v4, 7, v2')
        a('v_add_u32 v4, s19, v4')
        a('s_waitcnt lgkmcnt(0)')
        srd(a, 4, ptr=48, size=448*896)
        srd(a, 8, ptr=44, size=448*896)
        srd(a, 12, ptr=46, size=448*896)
        a('buffer_load_dword v5, v4, s[8:11], 0 offen')
        a('buffer_load_dword v6, v4, s[12:15], 0 offen')
        a('buffer_load_dword v7, v4, s[4:7], 0 offen')
        a('s_waitcnt vmcnt(0)')
        a('s_endpgm')
    a.label('K2_SCAN')
    a('s_cmp_ge_u32 s3, 4')
    a('s_cbranch_scc1 ' + ('K2_PF' if PF3 == 1 else 'K2_END'))
    a(f's_setprio {os.environ.get("SCANPRIO", "0")}')
    a('s_load_dwordx4 s[48:51], s[0:1], 8')
    a('s_load_dwordx2 s[52:53], s[0:1], 56')
    if PF3 == 2:
        a('s_load_dwordx4 s[44:47], s[0:1], 40')
        a('s_load_dwordx2 s[42:43], s[0:1], 88')
        a('s_load_dwordx2 s[54:55], s[0:1], 0')
    a(f's_sub_u32 s19, s2, {NATT}')
    a('s_and_b32 s20, s19, 7')
    a('s_lshl_b32 s20, s20, 2')
    a('s_add_u32 s20, s20, s3')
    a('s_lshr_b32 s21, s19, 3')
    a('s_mul_i32 s26, s20, 14')
    a('s_add_u32 s26, s26, s21')
    a('s_lshl_b32 s26, s26, 14')
    a(f's_add_u32 s26, s26, {WS_BU}')
    a('v_lshlrev_b32 v10, 4, v2')
    a('s_lshl_b32 s25, s21, 5')
    a('v_and_b32 v4, 31, v2')
    a('v_add_u32 v4, s25, v4')
    a('v_lshlrev_b32 v5, 1, v4')
    a('v_lshrrev_b32 v3, 5, v2')
    BU, EE = 32, 96
    a('s_waitcnt lgkmcnt(0)')
    srd(a, 4, ptr=40, size=WS_END)
    srd(a, 8, ptr=40, size=32*7168, add=WS_EE)
    srd(a, 56, ptr=48, size=896)
    srd(a, 60, ptr=50, size=896)
    srd(a, 64, ptr=52, size=896)
    a('s_sub_u32 s24, s20, 1')
    a('v_sub_u32 v11, s24, v3')
    a('s_movk_i32 s23, 7168')
    a('v_mul_lo_u32 v11, v11, s23')
    a('v_lshl_add_u32 v11, v4, 3, v11')
    a('v_add_u32 v11, 3584, v11')
    for i in range(16):
        a(f'buffer_load_dwordx2 {vr(EE+2*i,2)}, v11, s[8:11], 0 offen')
        if i < 15: a(f'v_subrev_u32 v11, 14336, v11')
    a('s_mul_i32 s24, s20, 7168')
    a('v_lshlrev_b32 v12, 3, v4')
    a('buffer_load_dwordx2 v[14:15], v12, s[8:11], s24 offen')
    for part in range(2):
        for q in range(8):
            a(f's_add_u32 s29, s26, {part*8192 + (q//4)*4096}')
            a(f'buffer_load_dwordx4 {vr(BU+part*32+q*4,4)}, v10, s[4:7], s29 offen offset:{(q%4)*1024}')
    LR, LI = 6, 7
    lam_params(a, 5, 16, 56, LR, LI)
    if PF3 == 2:
        a('s_lshl_b32 s32, s21, 2')
        a('s_add_u32 s32, s32, s3')
        a('s_lshl_b32 s32, s32, 13')
        a('v_lshlrev_b32 v31, 7, v2')
        a('v_add_u32 v31, s32, v31')
        srd(a, 12, ptr=44, size=448*896)
        srd(a, 36, ptr=46, size=448*896)
        srd(a, 32, ptr=42, size=448*896)
        a('buffer_load_dword v28, v31, s[12:15], 0 offen')
        a('buffer_load_dword v29, v31, s[36:39], 0 offen')
        a('buffer_load_dword v30, v31, s[32:35], 0 offen')
        srd(a, 44, ptr=54, size=2048*896)
        a('s_and_b32 s18, s19, 7')
        a('s_mul_i32 s18, s18, 229376')
        a('s_cmp_lt_u32 s32, 229376')
        a('s_cselect_b32 s18, s18, 0x7ff00000')
        a('v_add_u32 v1, s18, v31')
        a('buffer_load_dword v23, v1, s[44:47], 0 offen')
    stamp(a, 2)
    a(f'v_mov_b32 v8, v{LR}')
    a(f'v_mov_b32 v9, v{LI}')
    for k in range(5): csq(a, 8, 9, 8, 9, 16)
    csq(a, 12, 13, 8, 9, 16)
    csq(a, 24, 25, 12, 13, 16)
    a(f'v_mov_b32 v26, v{EE+30}')
    a(f'v_mov_b32 v27, v{EE+31}')
    for i in range(14, -1, -1):
        a(f'v_fma_f32 v16, v24, v26, v{EE+2*i}')
        a(f'v_fma_f32 v17, v24, v27, v{EE+2*i+1}')
        a(f'v_fma_f32 v16, -v25, v27, v16')
        a(f'v_fma_f32 v27, v25, v26, v17')
        a(f'v_mov_b32 v26, v16')
    a('v_mov_b32 v16, v26')
    a('v_mov_b32 v17, v27')
    a('s_nop 1')
    a('v_permlane32_swap_b32 v26, v16')
    a('v_permlane32_swap_b32 v27, v17')
    a('s_nop 1')
    a('v_fma_f32 v26, v12, v16, v26')
    a('v_fma_f32 v27, v12, v17, v27')
    a('v_fma_f32 v26, -v13, v17, v26')
    a('v_fma_f32 v27, v13, v16, v27')
    a('v_fma_f32 v16, v8, v26, v14')
    a('v_fma_f32 v17, v8, v27, v15')
    a('v_fma_f32 v16, -v9, v27, v16')
    a('v_fma_f32 v17, v9, v26, v17')
    a('v_cndmask_b32 v26, v26, v16, s[30:31]')
    a('v_cndmask_b32 v27, v27, v17, s[30:31]')
    R, I = BU, BU + 32
    pr, pi = 26, 27
    for t in range(32):
        a(f'v_fma_f32 v{R+t}, v{LR}, v{pr}, v{R+t}')
        a(f'v_fma_f32 v{I+t}, v{LR}, v{pi}, v{I+t}')
        a(f'v_fma_f32 v{R+t}, -v{LI}, v{pi}, v{R+t}')
        a(f'v_fma_f32 v{I+t}, v{LI}, v{pr}, v{I+t}')
        pr, pi = R+t, I+t
    stamp(a, 3)
    a('s_mul_i32 s24, s3, 6144')
    a('v_and_b32 v8, 31, v2')
    a('v_mul_u32_u24 v8, 192, v8')
    a('v_lshl_add_u32 v8, v3, 6, v8')
    a('v_add_u32 v8, s24, v8')
    a('v_lshlrev_b32 v9, 3, v3')
    a('v_bfe_u32 v12, v2, 2, 2')
    a('v_add_u32 v9, v9, v12')
    a('v_mul_u32_u24 v9, 192, v9')
    a('v_bfe_u32 v12, v2, 4, 1')
    a('v_lshl_add_u32 v9, v12, 5, v9')
    a('v_and_b32 v12, 3, v2')
    a('v_lshl_add_u32 v9, v12, 3, v9')
    a('v_add_u32 v9, s24, v9')
    a('s_mul_i32 s27, s20, 112')
    a('s_lshl_b32 s28, s21, 1')
    a('s_add_u32 s27, s27, s28')
    a('s_lshl_b32 s27, s27, 10')
    a(f's_add_u32 s27, s27, {WS_HF}')
    PK, FR = 96, 112
    for part in range(2):
        B = BU + part*32
        ng = '-' if part else ''
        for j in range(16):
            a(f'v_cvt_pk_bf16_f32 v{PK+j}, {ng}v{B+2*j}, {ng}v{B+2*j+1}')
        if part: a('s_waitcnt lgkmcnt(0)')
        for q in range(4):
            a(f'ds_write_b128 v8, {vr(PK+q*4,4)} offset:{q*16}')
        a('s_waitcnt lgkmcnt(0)')
        if part: a('s_nop 0')
        F = FR if part == 0 else BU
        for hp in range(2):
            for e in range(2):
                for sec in range(2):
                    a(f'ds_read_b64_tr_b16 {vr(F+(hp*2+e)*4+sec*2,2)}, v9 offset:{(16*e+4*sec)*192 + hp*64}')
        a('s_waitcnt lgkmcnt(0)')
        for hp in range(2):
            for e in range(2):
                a(f's_add_u32 s29, s27, {(hp*56 + part*28 + e)*1024}')
                a(f'buffer_store_dwordx4 {vr(F+(hp*2+e)*4,4)}, v10, s[4:7], s29 offen')
    stamp(a, 4); a('s_waitcnt vmcnt(0)') if STAMPS else None; stamp(a, 5); stamp(a, 6, True)
    stamp_flush(a, NATT+8, 7, 1); stamp_flush(a, NATT+110, 7, 3)
    a.label('K2_END')
    a('s_endpgm')
    return name, 128
```

```python
import os
from common import *
from k1 import xtype_read_addrs

def gen_k3(a):
    name = 'k3_out_kernel'
    kernel_header(a, name)
    a('s_cmp_ge_u32 s2, 224')
    a('s_cbranch_scc1 K3_END')
    stamp(a, 0); stamp(a, 1, True)
    a('s_load_dwordx2 s[40:41], s[0:1], 112')
    a('s_load_dwordx2 s[42:43], s[0:1], 96')
    a('v_lshrrev_b32 v1, 6, v0')
    a('v_and_b32 v2, 63, v0')
    a('s_nop 0')
    a('v_readfirstlane_b32 s3, v1')
    a('s_cmp_ge_u32 s2, 112')
    a('s_cselect_b32 s19, 112, 0')
    a('s_sub_u32 s19, s2, s19')
    a('s_and_b32 s20, s19, 7')
    a('s_lshl_b32 s20, s20, 1')
    a('s_bfe_u32 s21, s19, 0x10003')
    a('s_add_u32 s20, s20, s21')
    a('s_lshr_b32 s21, s19, 4')
    a('s_lshl_b32 s22, s20, 2')
    a('s_add_u32 s22, s22, s3')
    a('v_lshlrev_b32 v4, 4, v2')
    a('s_lshl_b32 s24, s22, 5')
    a('v_and_b32 v5, 31, v2')
    a('v_add_u32 v5, s24, v5')
    a('v_lshrrev_b32 v3, 5, v2')
    a('v_mul_u32_u24 v6, 3584, v5')
    a('v_lshl_add_u32 v6, v3, 4, v6')
    a('s_lshl_b32 s24, s21, 8')
    a('v_add_u32 v6, s24, v6')
    ACC = 32; ACT = 64; WF = 192
    for r in range(32): a(f'v_mov_b32 v{ACC+r}, 0')
    a('s_cmp_ge_u32 s2, 112')
    a('s_cbranch_scc1 K3_B')
    a('s_load_dwordx4 s[44:47], s[0:1], 40')
    a('s_load_dwordx2 s[48:49], s[0:1], 0')
    a('s_load_dwordx2 s[50:51], s[0:1], 64')
    a('s_lshl_b32 s24, s21, 6')
    a('s_lshl_b32 s25, s3, 4')
    a('s_add_u32 s24, s24, s25')
    a('v_lshrrev_b32 v8, 3, v2')
    a('v_add_u32 v8, s24, v8')
    a('v_mul_u32_u24 v8, 896, v8')
    a('v_and_b32 v9, 7, v2')
    a('v_lshrrev_b32 v10, 4, v2')
    a('v_xor_b32 v9, v9, v10')
    a('v_xor_b32 v10, 4, v9')
    a('v_lshl_add_u32 v12, v9, 4, v8')
    a('v_lshl_add_u32 v13, v10, 4, v8')
    a('v_add_u32 v13, 7168, v13')
    xtype_read_addrs(a, 16, 2, 8, 9)
    for s in range(4): a(f'v_add_u32 v{20+s}, 57344, v{16+s}')
    a('v_mul_u32_u24 v24, 896, v5')
    a('v_lshl_add_u32 v24, v3, 3, v24')
    a('s_lshl_b32 s24, s21, 7')
    a('v_add_u32 v24, s24, v24')
    a('v_lshlrev_b32 v25, 3, v3')
    a('v_add_u32 v25, s24, v25')
    a('s_waitcnt lgkmcnt(0)')
    srd(a, 4, ptr=40, size=WS_END)
    srd(a, 8, ptr=44, size=448*896)
    srd(a, 12, ptr=46, size=448*896)
    srd(a, 16, ptr=42, size=2048*3584)
    srd(a, 52, ptr=48, size=2048*896)
    srd(a, 56, ptr=50, size=896)
    a('s_mul_i32 s26, s22, 57344')
    a(f's_add_u32 s26, s26, {WS_HF}')
    a('s_lshl_b32 s27, s3, 11')
    def dma(st):
        srdn = 8 if st < 7 else 12
        for j in range(2):
            a(f's_add_u32 m0, s27, {st*8192 + j*1024}')
            a(f's_movk_i32 s29, {128*(st % 7)}')
            a(f'buffer_load_dwordx4 v{12+j}, s[{srdn}:{srdn+3}], s29 offen lds')
    def act(st):
        a(f's_add_u32 s29, s26, {st*4096}')
        for k in range(4):
            a(f'buffer_load_dwordx4 {vr(ACT+((st%7)*4+k)*4,4)}, v4, s[4:7], s29 offen offset:{k*1024}')
    LA = int(os.environ.get('LA', '4'))
    XR = 208; DR = 224
    def xd():
        for ct in range(2):
            for g in range(4):
                a(f'buffer_load_dwordx2 {vr(XR+(ct*4+g)*2,2)}, v24, s[52:55], 0 offen offset:{ct*64+g*16}')
                a(f'buffer_load_dwordx2 {vr(DR+(ct*4+g)*2,2)}, v25, s[56:59], 0 offen offset:{ct*64+g*16}')
    for st in range(LA):
        dma(st); act(st)
    XS = int(os.environ.get('XS', '10'))
    def rd(t):
        st, s = t // 4, t % 4
        base = (16 if st < 7 else 20) + s
        for ct in range(2):
            a(f'ds_read_b128 {vr(WF+(t&1)*8+ct*4,4)}, v{base} offset:{(st%7)*8192 + ct*4096}')
    for t in range(56):
        st, s = t // 4, t % 4
        if s == 0:
            later = min(st + LA - 1, 13) - st
            extra = 16 if XS < st <= XS + LA else 0
            a(f's_waitcnt vmcnt({6*later + extra})')
            a('s_barrier')
            if st == 0: stamp(a, 2)
            rd(t)
            if st + LA <= 13:
                dma(st + LA); act(st + LA)
            if st == XS: xd()
        nxt = t + 1
        if nxt < 56 and nxt % 4 != 0:
            rd(nxt)
            a('s_waitcnt lgkmcnt(2)')
        else:
            a('s_waitcnt lgkmcnt(0)')
        for ct in range(2):
            c = vr(ACC+ct*16, 16)
            a(f'v_mfma_f32_32x32x16_bf16 {c}, {vr(WF+(t&1)*8+ct*4,4)}, {vr(ACT+((st%7)*4+s)*4,4)}, {c}')
            if t >= 52 and XS <= 8:
              for q in ((t - 52) * 4 + ct * 2, (t - 52) * 4 + ct * 2 + 1):
                x = XR + q; d = DR + q
                a(f'v_lshlrev_b32 v8, 16, v{x}')
                a(f'v_and_b32 v9, 0xffff0000, v{x}')
                a(f'v_lshlrev_b32 v{x}, 16, v{d}')
                a(f'v_and_b32 v{d}, 0xffff0000, v{d}')
                a(f'v_mul_f32 v{x}, v{x}, v8')
                a(f'v_mul_f32 v{d}, v{d}, v9')
    stamp(a, 3)
    def prod(q):
        x = XR + q; d = DR + q
        a(f'v_lshlrev_b32 v8, 16, v{x}')
        a(f'v_and_b32 v9, 0xffff0000, v{x}')
        a(f'v_lshlrev_b32 v{x}, 16, v{d}')
        a(f'v_and_b32 v{d}, 0xffff0000, v{d}')
        a(f'v_mul_f32 v{x}, v{x}, v8')
        a(f'v_mul_f32 v{d}, v{d}, v9')
    if XS > 8:
        a('s_waitcnt vmcnt(0)')
        prod(0); prod(1)
    else:
        a('s_nop 7'); a('s_nop 3')
    for ct in range(2):
        for g in range(4):
            x = XR+(ct*4+g)*2; d = DR+(ct*4+g)*2; c = ACC+ct*16+g*4
            if XS > 8 and (ct or g):
                prod((ct*4+g)*2); prod((ct*4+g)*2+1)
            for e in range(4):
                a(f'v_fma_f32 v{c+e}, 2.0, v{c+e}, v{(x if e % 2 == 0 else d)+e//2}')
            a(f'buffer_store_dwordx4 {vr(c,4)}, v6, s[16:19], 0 offen offset:{ct*128+g*32}')
    stamp(a, 4); a('s_waitcnt vmcnt(0)') if STAMPS else None; stamp(a, 5); stamp(a, 6, True)
    stamp_flush(a, 8, 7, 0); stamp_flush(a, 110, 7, 2)
    a('s_endpgm')
    a.label('K3_B')
    a('s_load_dwordx2 s[44:45], s[0:1], 88')
    a('s_mul_i32 s24, s3, 120')
    a('v_lshrrev_b32 v8, 3, v2')
    a('v_add_u32 v8, s24, v8')
    a('v_mul_u32_u24 v8, 896, v8')
    a('v_bfe_u32 v9, v2, 4, 1')
    a('v_lshlrev_b32 v9, 2, v9')
    a('v_and_b32 v10, 7, v2')
    a('v_xor_b32 v9, v9, v10')
    a('v_lshl_add_u32 v12, v9, 4, v8')
    a('s_lshl_b32 s24, s21, 7')
    a('v_add_u32 v12, s24, v12')
    a('v_lshlrev_b32 v8, 2, v3')
    a('v_bfe_u32 v9, v2, 2, 2')
    a('v_add_u32 v8, v8, v9')
    a('v_lshlrev_b32 v8, 7, v8')
    a('v_bfe_u32 v9, v2, 4, 1')
    a('v_lshl_add_u32 v8, v9, 5, v8')
    a('v_and_b32 v9, 3, v2')
    a('v_lshl_add_u32 v8, v9, 3, v8')
    a('v_bfe_u32 v9, v2, 3, 1')
    a('v_lshl_add_u32 v16, v9, 6, v8')
    a('v_xor_b32 v17, 64, v16')
    a('v_add_u32 v6, 1792, v6')
    a('s_waitcnt lgkmcnt(0)')
    srd(a, 4, ptr=40, size=WS_END)
    srd(a, 8, ptr=44, size=448*896)
    srd(a, 16, ptr=42, size=2048*3584)
    a('s_mul_i32 s27, s3, 15360')
    for j in range(15):
        a(f's_add_u32 m0, s27, {j*1024}')
        a(f's_movk_i32 s29, 0')
        a(f'buffer_load_dwordx4 v12, s[8:11], 0 offen lds')
        if j < 14: a('v_add_u32 v12, 7168, v12')
    a('s_lshl_b32 s26, s22, 15')
    a(f's_add_u32 s26, s26, {WS_OF}')
    LB = 12
    def act2(u):
        if u % 4 == 0: a(f's_add_u32 s29, s26, {u*1024}')
        a(f'buffer_load_dwordx4 {vr(ACT+u*4,4)}, v4, s[4:7], s29 offen offset:{(u%4)*1024}')
    for u in range(LB): act2(u)
    a(f's_waitcnt vmcnt({LB})')
    a('s_barrier')
    stamp(a, 2)
    def rd2(u):
        h, s = u // 2, u % 2
        for ct in range(2):
            for sec in range(2):
                a(f'ds_read_b64_tr_b16 {vr(WF+(u&1)*8+ct*4+sec*2,2)}, v{16+ct} offset:{(28*h+16*s+8*sec)*128}')
    rd2(0)
    for u in range(32):
        if u + LB < 32: act2(u + LB)
        infl = min(u + LB, 31) - u
        if u < 31:
            rd2(u+1)
            a(f's_waitcnt vmcnt({infl}) lgkmcnt(4)')
        else:
            a('s_waitcnt vmcnt(0) lgkmcnt(0)')
        for ct in range(2):
            c = vr(ACC+ct*16, 16)
            a(f'v_mfma_f32_32x32x16_bf16 {c}, {vr(WF+(u&1)*8+ct*4,4)}, {vr(ACT+u*4,4)}, {c}')
    stamp(a, 3)
    a('s_nop 7'); a('s_nop 3')
    for ct in range(2):
        for g in range(4):
            a(f'buffer_store_dwordx4 {vr(ACC+ct*16+g*4,4)}, v6, s[16:19], 0 offen offset:{ct*128+g*32}')
    stamp(a, 4); a('s_waitcnt vmcnt(0)') if STAMPS else None; stamp(a, 5); stamp(a, 6, True)
    stamp_flush(a, 120, 7, 1); stamp_flush(a, 222, 7, 3)
    a.label('K3_END')
    a('s_endpgm')
    return name, 240
```

```python
from common import *
import struct
def f2u(x): return struct.unpack('<I', struct.pack('<f', x))[0]
import os
PF3 = int(os.environ.get('PF3', '2'))
NATT = 256
NSCAN = 112

def set_standin(a, Q1, M, t0, t1, t2):
    a(f'v_cvt_pk_bf16_f32 v{t0}, -v{M}, -v{M}')
    a(f'v_and_b32 v{t0}, 0xffff0000, v{t0}')
    a(f'v_sub_f32 v{t1}, -v{M}, v{t0}')
    a(f'v_cvt_pk_bf16_f32 v{t1}, v{t1}, v{t1}')
    a(f'v_and_b32 v{t1}, 0xffff0000, v{t1}')
    a(f'v_add_f32 v{M}, v{t0}, v{t1}')
    a(f'v_sub_f32 v{M}, 0, v{M}')
    a(f'v_lshrrev_b32 v{t2}, 16, v{t0}')
    a(f'v_or_b32 v{t2}, v{t2}, v{t1}')
    a(f'v_cndmask_b32 v{Q1+2}, v{Q1+2}, v{t2}, s[30:31]')

def colmax(a, S, M, t0):
    a(f'v_max3_f32 v{M}, v{S}, v{S+1}, v{S+2}')
    for r in range(3, 15, 2):
        a(f'v_max3_f32 v{M}, v{M}, v{S+r}, v{S+r+1}')
    a(f'v_max_f32 v{M}, v{M}, v{S+15}')
    xhalf_max(a, M, t0)

def xhalf_max(a, M, t0):
    a(f'v_mov_b32 v{t0}, v{M}')
    a('s_nop 1')
    a(f'v_permlane32_swap_b32 v{M}, v{t0}')
    a('s_nop 1')
    a(f'v_max_f32 v{M}, v{M}, v{t0}')

def gen_k2(a):
    name = 'k2_attn_kernel'
    kernel_header(a, name)
    a(f's_cmp_ge_u32 s2, {NATT+NSCAN}')
    a('s_cbranch_scc1 K2_END')
    stamp(a, 0); stamp(a, 1, True)
    a('s_load_dwordx2 s[40:41], s[0:1], 112')
    a('v_lshrrev_b32 v1, 6, v0')
    a('v_and_b32 v2, 63, v0')
    a('s_nop 0')
    a('v_readfirstlane_b32 s3, v1')
    a('s_mov_b32 s30, 0')
    a('s_mov_b32 s31, -1')
    a(f's_cmp_ge_u32 s2, {NATT}')
    a('s_cbranch_scc1 K2_SCAN')
    a('s_setprio 2')
    a('s_and_b32 s20, s2, 7')
    a('s_lshl_b32 s20, s20, 1')
    a('s_bfe_u32 s21, s2, 0x10003')
    a('s_add_u32 s20, s20, s21')
    a('s_lshr_b32 s21, s2, 4')
    a('s_and_b32 s22, s3, 3')
    a('s_lshr_b32 s23, s3, 2')
    a('v_lshlrev_b32 v4, 4, v2')
    a('s_lshl_b32 s24, s23, 13')
    a('v_add_u32 v5, s24, v4')
    a('s_lshl_b32 s25, s20, 6')
    a('s_lshl_b32 s26, s21, 2')
    a('s_add_u32 s26, s26, s22')
    a('s_add_u32 s27, s25, s26')
    a('s_lshl_b32 s27, s27, 11')
    a('s_lshl_b32 s28, s23, 5')
    a('s_add_u32 s28, s28, s25')
    a('s_lshl_b32 s28, s28, 11')
    a(f's_add_u32 s33, s28, {WS_KF}')
    a(f's_add_u32 s34, s28, {WS_VF}')
    a('s_cmp_lt_u32 s22, 2')
    a('s_cselect_b32 s28, s33, s34')
    a('s_and_b32 s29, s22, 1')
    a('s_lshl_b32 s29, s29, 11')
    a('s_add_u32 s28, s28, s29')
    a('s_lshl_b32 s29, s22, 11')
    a('s_add_u32 s29, s29, s24')
    O, S0, S1, P, Q, KB, VB, M = 16, 32, 48, 64, 72, 80, 96, 6
    a('s_waitcnt lgkmcnt(0)')
    srd(a, 4, ptr=40, size=WS_END)
    a(f'buffer_load_dwordx4 {vr(Q,4)}, v4, s[4:7], s27 offen')
    a(f'buffer_load_dwordx4 {vr(Q+4,4)}, v4, s[4:7], s27 offen offset:1024')
    def dma(slot):
        a(f's_add_u32 m0, s29, {slot*16384}')
        a('s_nop 0')
        a('buffer_load_dwordx4 v4, s[4:7], s28 offen lds')
        a('buffer_load_dwordx4 v4, s[4:7], s28 offen offset:1024 lds')
        a('s_add_u32 s28, s28, 4096')
    dma(0); dma(1)
    a('s_lshl_b32 s36, s21, 2')
    a('s_add_u32 s36, s36, s25')
    a('s_lshl_b32 s36, s36, 11')
    a(f's_add_u32 s36, s36, {WS_KF}')
    a('s_lshl_b32 s37, s23, 21')
    a('s_add_u32 s36, s36, s37')
    a('s_lshl_b32 s37, s22, 11')
    a('s_add_u32 s36, s36, s37')
    a('v_and_b32 v7, 15, v2')
    a('v_lshlrev_b32 v7, 7, v7')
    a('buffer_load_dword v112, v7, s[4:7], s36 offen')
    dma(2)
    for r in range(16): a(f'v_mov_b32 v{O+r}, 0')
    def rdK(tile, buf):
        off = ((tile >> 1) & 3) * 16384 + (tile & 1) * 2048
        a(f'ds_read_b128 {vr(KB+buf*8,4)}, v5 offset:{off}')
        a(f'ds_read_b128 {vr(KB+buf*8+4,4)}, v5 offset:{off+1024}')
    def rdV(tile, buf):
        off = ((tile >> 1) & 3) * 16384 + 4096 + (tile & 1) * 2048
        a(f'ds_read_b128 {vr(VB+buf*8,4)}, v5 offset:{off}')
        a(f'ds_read_b128 {vr(VB+buf*8+4,4)}, v5 offset:{off+1024}')
    def qk(S, kb, which):
        if which == 0: a(f'v_mfma_f32_32x32x16_bf16 {vr(S,16)}, {vr(kb,4)}, {vr(Q,4)}, 0')
        else:          a(f'v_mfma_f32_32x32x16_bf16 {vr(S,16)}, {vr(kb+4,4)}, {vr(Q+4,4)}, {vr(S,16)}')
    a('s_waitcnt vmcnt(5)')
    a('s_barrier')
    stamp(a, 2)
    rdK(0, 0); rdK(1, 1); rdV(0, 0)
    a('s_waitcnt lgkmcnt(4)')
    qk(S0, KB, 0); qk(S0, KB, 1)
    a('s_nop 7'); a('s_nop 3')
    colmax(a, S0, M, 7)
    set_standin(a, Q+4, M, 7, 8, 9)
    a('s_nop 1')
    qk(S0, KB, 0); qk(S0, KB, 1)
    for j in range(4):
        a(f'v_mov_b32 v{P+4+j}, 0')
        a(f'v_mov_b32 v{VB+12+j}, 0')
    a('s_mov_b32 s35, 4')
    a.label('K2_LOOP')
    def ex(S, r): a(f'v_exp_f32 v{S+r}, v{S+r}')
    def cv(S, j): a(f'v_cvt_pk_bf16_f32 v{P+j}, v{S+2*j}, v{S+2*j+1}')
    for t in range(8):
        Sc = S0 if t % 2 == 0 else S1
        Sn = S1 if t % 2 == 0 else S0
        kn = KB + ((t+1) & 1) * 8
        vc = VB + (t & 1) * 8
        vp = VB + ((t+1) & 1) * 8
        if t % 2 == 0:
            a('s_waitcnt vmcnt(2) lgkmcnt(0)')
            a('s_barrier')
        else:
            a('s_waitcnt lgkmcnt(0)')
        rdK(t+2, t & 1)
        a(f'v_mfma_f32_32x32x16_bf16 {vr(O,16)}, {vr(vp+4,4)}, {vr(P+4,4)}, {vr(O,16)}')
        for r in range(4): ex(Sc, r)
        rdV(t+1, (t+1) & 1)
        cv(Sc, 0); cv(Sc, 1)
        qk(Sn, kn, 0)
        for r in range(4, 8): ex(Sc, r)
        if t % 2 == 0: dma(((t >> 1) + 3) & 3)
        cv(Sc, 2); cv(Sc, 3)
        qk(Sn, kn, 1)
        for r in range(8, 12): ex(Sc, r)
        cv(Sc, 4); cv(Sc, 5)
        a(f'v_mfma_f32_32x32x16_bf16 {vr(O,16)}, {vr(vc,4)}, {vr(P,4)}, {vr(O,16)}')
        for r in range(12, 16): ex(Sc, r)
        cv(Sc, 6); cv(Sc, 7)
    a('s_sub_u32 s35, s35, 1')
    a('s_cmp_lg_u32 s35, 0')
    a('s_cbranch_scc1 K2_LOOP')
    a('s_nop 0')
    a(f'v_mfma_f32_32x32x16_bf16 {vr(O,16)}, {vr(VB+12,4)}, {vr(P+4,4)}, {vr(O,16)}')
    stamp(a, 3)
    a('s_nop 7'); a('s_nop 3')
    a(f'v_mov_b32 v7, 0x4e800000')
    a(f'v_cmp_nlt_f32 vcc, v{O+12}, v7')
    a('s_nop 1')
    a('s_and_b64 vcc, vcc, s[30:31]')
    a('s_cbranch_vccz K2_MERGE')
    a(f'v_mov_b32 v8, 0xff800000')
    a('s_mov_b32 s35, 32')
    a('s_mov_b32 s36, s33')
    a.label('K2_FB1')
    a(f'buffer_load_dwordx4 {vr(KB,4)}, v4, s[4:7], s36 offen')
    a(f'buffer_load_dwordx4 {vr(KB+4,4)}, v4, s[4:7], s36 offen offset:1024')
    a('s_waitcnt vmcnt(0)')
    qk(S0, KB, 0); qk(S0, KB, 1)
    a('s_nop 7'); a('s_nop 3')
    for r in range(0, 16, 2):
        a(f'v_max3_f32 v8, v8, v{S0+r}, v{S0+r+1}')
    a('s_add_u32 s36, s36, 2048')
    a('s_sub_u32 s35, s35, 1')
    a('s_cmp_lg_u32 s35, 0')
    a('s_cbranch_scc1 K2_FB1')
    xhalf_max(a, 8, 7)
    a(f'v_add_f32 v{M}, v{M}, v8')
    set_standin(a, Q+4, M, 7, 8, 9)
    for r in range(16): a(f'v_mov_b32 v{O+r}, 0')
    a('s_mov_b32 s35, 32')
    a('s_mov_b32 s36, s33')
    a('s_mov_b32 s37, s34')
    a.label('K2_FB2')
    a(f'buffer_load_dwordx4 {vr(KB,4)}, v4, s[4:7], s36 offen')
    a(f'buffer_load_dwordx4 {vr(KB+4,4)}, v4, s[4:7], s36 offen offset:1024')
    a(f'buffer_load_dwordx4 {vr(VB,4)}, v4, s[4:7], s37 offen')
    a(f'buffer_load_dwordx4 {vr(VB+4,4)}, v4, s[4:7], s37 offen offset:1024')
    a('s_waitcnt vmcnt(0)')
    qk(S0, KB, 0); qk(S0, KB, 1)
    a('s_nop 7'); a('s_nop 3')
    for r in range(16): a(f'v_exp_f32 v{S0+r}, v{S0+r}')
    a('s_nop 1')
    for j in range(8): a(f'v_cvt_pk_bf16_f32 v{P+j}, v{S0+2*j}, v{S0+2*j+1}')
    a('s_nop 1')
    a(f'v_mfma_f32_32x32x16_bf16 {vr(O,16)}, {vr(VB,4)}, {vr(P,4)}, {vr(O,16)}')
    a(f'v_mfma_f32_32x32x16_bf16 {vr(O,16)}, {vr(VB+4,4)}, {vr(P+4,4)}, {vr(O,16)}')
    a('s_add_u32 s36, s36, 2048')
    a('s_add_u32 s37, s37, 2048')
    a('s_sub_u32 s35, s35, 1')
    a('s_cmp_lg_u32 s35, 0')
    a('s_cbranch_scc1 K2_FB2')
    a('s_nop 7'); a('s_nop 3')
    a.label('K2_MERGE')
    a('s_waitcnt vmcnt(0) lgkmcnt(0)')
    a('s_barrier')
    a('s_mul_i32 s36, s22, 5120')
    a('v_add_u32 v8, s36, v4')
    a('v_lshlrev_b32 v9, 2, v2')
    a('v_add_u32 v9, s36, v9')
    a('s_cmp_eq_u32 s23, 0')
    a('s_cbranch_scc1 K2_M0')
    for q in range(4):
        a(f'ds_write_b128 v8, {vr(O+4*q,4)} offset:{q*1024}')
    a(f'ds_write_b32 v9, v{M} offset:4096')
    a('s_waitcnt lgkmcnt(0)')
    a('s_barrier')
    a('s_endpgm')
    a.label('K2_M0')
    a('s_barrier')
    for q in range(4):
        a(f'ds_read_b128 {vr(S0+4*q,4)}, v8 offset:{q*1024}')
    a(f'ds_read_b32 v10, v9 offset:4096')
    a('s_waitcnt lgkmcnt(0)')
    a(f'v_max_f32 v11, v{M}, v10')
    a(f'v_sub_f32 v12, v{M}, v11')
    a(f'v_sub_f32 v13, v10, v11')
    a('v_exp_f32 v12, v12')
    a('v_exp_f32 v13, v13')
    a('s_nop 1')
    a(f'v_mul_f32 v14, v12, v{O+12}')
    a(f'v_fmac_f32 v14, v13, v{S0+12}')
    a('v_mov_b32 v15, v14')
    a('s_nop 1')
    a('v_permlane32_swap_b32 v15, v14')
    a('s_nop 1')
    a('v_rcp_f32 v14, v14')
    a('s_nop 1')
    a('v_mul_f32 v12, v12, v14')
    a('v_mul_f32 v13, v13, v14')
    for r in range(16):
        a(f'v_mul_f32 v{O+r}, v12, v{O+r}')
        a(f'v_fmac_f32 v{O+r}, v13, v{S0+r}')
    for j in range(8): a(f'v_cvt_pk_bf16_f32 v{P+j}, v{O+2*j}, v{O+2*j+1}')
    a('v_mov_b32 v7, 0')
    a(f'v_cndmask_b32 v{P+6}, v{P+6}, v7, s[30:31]')
    a(f'v_cndmask_b32 v{P+7}, v{P+7}, v7, s[30:31]')
    a('s_lshl_b32 s36, s26, 4')
    a('s_add_u32 s36, s36, s20')
    a('s_lshl_b32 s36, s36, 11')
    a(f's_add_u32 s36, s36, {WS_OF}')
    a(f'buffer_store_dwordx4 {vr(P,4)}, v4, s[4:7], s36 offen')
    a(f'buffer_store_dwordx4 {vr(P+4,4)}, v4, s[4:7], s36 offen offset:1024')
    stamp(a, 4); a('s_waitcnt vmcnt(0)') if STAMPS else None; stamp(a, 5); stamp(a, 6, True)
    stamp_flush(a, 8, 7, 0); stamp_flush(a, 250, 7, 2)
    a('s_endpgm')
    if PF3 == 1:
        a.label('K2_PF')
        a('s_load_dwordx4 s[44:47], s[0:1], 40')
        a('s_load_dwordx2 s[48:49], s[0:1], 88')
        a(f's_sub_u32 s19, s2, {NATT}')
        a('s_lshr_b32 s19, s19, 3')
        a('s_lshl_b32 s19, s19, 2')
        a('s_add_u32 s19, s19, s3')
        a('s_sub_u32 s19, s19, 4')
        a('s_lshl_b32 s19, s19, 13')
        a('v_lshlrev_b32 v4, 7, v2')
        a('v_add_u32 v4, s19, v4')
        a('s_waitcnt lgkmcnt(0)')
        srd(a, 4, ptr=48, size=448*896)
        srd(a, 8, ptr=44, size=448*896)
        srd(a, 12, ptr=46, size=448*896)
        a('buffer_load_dword v5, v4, s[8:11], 0 offen')
        a('buffer_load_dword v6, v4, s[12:15], 0 offen')
        a('buffer_load_dword v7, v4, s[4:7], 0 offen')
        a('s_waitcnt vmcnt(0)')
        a('s_endpgm')
    a.label('K2_SCAN')
    a('s_cmp_ge_u32 s3, 4')
    a('s_cbranch_scc1 ' + ('K2_PF' if PF3 == 1 else 'K2_END'))
    a(f's_setprio {os.environ.get("SCANPRIO", "0")}')
    a('s_load_dwordx4 s[48:51], s[0:1], 8')
    a('s_load_dwordx2 s[52:53], s[0:1], 56')
    if PF3 == 2:
        a('s_load_dwordx4 s[44:47], s[0:1], 40')
        a('s_load_dwordx2 s[42:43], s[0:1], 88')
        a('s_load_dwordx2 s[54:55], s[0:1], 0')
    a(f's_sub_u32 s19, s2, {NATT}')
    a('s_and_b32 s20, s19, 7')
    a('s_lshl_b32 s20, s20, 2')
    a('s_add_u32 s20, s20, s3')
    a('s_lshr_b32 s21, s19, 3')
    a('s_mul_i32 s26, s20, 14')
    a('s_add_u32 s26, s26, s21')
    a('s_lshl_b32 s26, s26, 14')
    a(f's_add_u32 s26, s26, {WS_BU}')
    a('v_lshlrev_b32 v10, 4, v2')
    a('s_lshl_b32 s25, s21, 5')
    a('v_and_b32 v4, 31, v2')
    a('v_add_u32 v4, s25, v4')
    a('v_lshlrev_b32 v5, 1, v4')
    a('v_lshrrev_b32 v3, 5, v2')
    BU, EE = 32, 96
    a('s_waitcnt lgkmcnt(0)')
    srd(a, 4, ptr=40, size=WS_END)
    srd(a, 8, ptr=40, size=32*7168, add=WS_EE)
    srd(a, 56, ptr=48, size=896)
    srd(a, 60, ptr=50, size=896)
    srd(a, 64, ptr=52, size=896)
    a('s_sub_u32 s24, s20, 1')
    a('v_sub_u32 v11, s24, v3')
    a('s_movk_i32 s23, 7168')
    a('v_mul_lo_u32 v11, v11, s23')
    a('v_lshl_add_u32 v11, v4, 3, v11')
    a('v_add_u32 v11, 3584, v11')
    for i in range(16):
        a(f'buffer_load_dwordx2 {vr(EE+2*i,2)}, v11, s[8:11], 0 offen')
        if i < 15: a(f'v_subrev_u32 v11, 14336, v11')
    a('s_mul_i32 s24, s20, 7168')
    a('v_lshlrev_b32 v12, 3, v4')
    a('buffer_load_dwordx2 v[14:15], v12, s[8:11], s24 offen')
    for part in range(2):
        for q in range(8):
            a(f's_add_u32 s29, s26, {part*8192 + (q//4)*4096}')
            a(f'buffer_load_dwordx4 {vr(BU+part*32+q*4,4)}, v10, s[4:7], s29 offen offset:{(q%4)*1024}')
    LR, LI = 6, 7
    lam_params(a, 5, 16, 56, LR, LI)
    if PF3 == 2:
        a('s_lshl_b32 s16, s21, 2')
        a('s_add_u32 s16, s16, s3')
        a('s_lshl_b32 s16, s16, 13')
        a('v_lshlrev_b32 v31, 7, v2')
        a('v_add_u32 v31, s16, v31')
        srd(a, 12, ptr=44, size=448*896)
        srd(a, 36, ptr=46, size=448*896)
        srd(a, 32, ptr=42, size=448*896)
        a('buffer_load_dword v28, v31, s[12:15], 0 offen')
        a('buffer_load_dword v29, v31, s[36:39], 0 offen')
        a('buffer_load_dword v30, v31, s[32:35], 0 offen')
        srd(a, 44, ptr=54, size=2048*896)
        a('s_and_b32 s18, s19, 7')
        a('s_mul_i32 s18, s18, 229376')
        a('s_cmp_lt_u32 s16, 229376')
        a('s_cselect_b32 s18, s18, 0x7ff00000')
        a('v_add_u32 v1, s18, v31')
        a('buffer_load_dword v23, v1, s[44:47], 0 offen')
    stamp(a, 2)
    a(f'v_mov_b32 v8, v{LR}')
    a(f'v_mov_b32 v9, v{LI}')
    for k in range(5): csq(a, 8, 9, 8, 9, 16)
    csq(a, 12, 13, 8, 9, 16)
    csq(a, 24, 25, 12, 13, 16)
    a(f'v_mov_b32 v26, v{EE+30}')
    a(f'v_mov_b32 v27, v{EE+31}')
    for i in range(14, -1, -1):
        a(f'v_fma_f32 v16, v24, v26, v{EE+2*i}')
        a(f'v_fma_f32 v17, v24, v27, v{EE+2*i+1}')
        a(f'v_fma_f32 v16, -v25, v27, v16')
        a(f'v_fma_f32 v27, v25, v26, v17')
        a(f'v_mov_b32 v26, v16')
    a('v_mov_b32 v16, v26')
    a('v_mov_b32 v17, v27')
    a('s_nop 1')
    a('v_permlane32_swap_b32 v26, v16')
    a('v_permlane32_swap_b32 v27, v17')
    a('s_nop 1')
    a('v_fma_f32 v26, v12, v16, v26')
    a('v_fma_f32 v27, v12, v17, v27')
    a('v_fma_f32 v26, -v13, v17, v26')
    a('v_fma_f32 v27, v13, v16, v27')
    a('v_fma_f32 v16, v8, v26, v14')
    a('v_fma_f32 v17, v8, v27, v15')
    a('v_fma_f32 v16, -v9, v27, v16')
    a('v_fma_f32 v17, v9, v26, v17')
    a('v_cndmask_b32 v26, v26, v16, s[30:31]')
    a('v_cndmask_b32 v27, v27, v17, s[30:31]')
    R, I = BU, BU + 32
    pr, pi = 26, 27
    for t in range(32):
        a(f'v_fma_f32 v{R+t}, v{LR}, v{pr}, v{R+t}')
        a(f'v_fma_f32 v{I+t}, v{LR}, v{pi}, v{I+t}')
        a(f'v_fma_f32 v{R+t}, -v{LI}, v{pi}, v{R+t}')
        a(f'v_fma_f32 v{I+t}, v{LI}, v{pr}, v{I+t}')
        pr, pi = R+t, I+t
    stamp(a, 3)
    a('s_mul_i32 s24, s3, 6144')
    a('v_and_b32 v8, 31, v2')
    a('v_mul_u32_u24 v8, 192, v8')
    a('v_lshl_add_u32 v8, v3, 6, v8')
    a('v_add_u32 v8, s24, v8')
    a('v_lshlrev_b32 v9, 3, v3')
    a('v_bfe_u32 v12, v2, 2, 2')
    a('v_add_u32 v9, v9, v12')
    a('v_mul_u32_u24 v9, 192, v9')
    a('v_bfe_u32 v12, v2, 4, 1')
    a('v_lshl_add_u32 v9, v12, 5, v9')
    a('v_and_b32 v12, 3, v2')
    a('v_lshl_add_u32 v9, v12, 3, v9')
    a('v_add_u32 v9, s24, v9')
    a('s_mul_i32 s27, s20, 112')
    a('s_lshl_b32 s28, s21, 1')
    a('s_add_u32 s27, s27, s28')
    a('s_lshl_b32 s27, s27, 10')
    a(f's_add_u32 s27, s27, {WS_HF}')
    PK, FR = 96, 112
    for part in range(2):
        B = BU + part*32
        ng = '-' if part else ''
        for j in range(16):
            a(f'v_cvt_pk_bf16_f32 v{PK+j}, {ng}v{B+2*j}, {ng}v{B+2*j+1}')
        if part: a('s_waitcnt lgkmcnt(0)')
        for q in range(4):
            a(f'ds_write_b128 v8, {vr(PK+q*4,4)} offset:{q*16}')
        a('s_waitcnt lgkmcnt(0)')
        if part: a('s_nop 0')
        F = FR if part == 0 else BU
        for hp in range(2):
            for e in range(2):
                for sec in range(2):
                    a(f'ds_read_b64_tr_b16 {vr(F+(hp*2+e)*4+sec*2,2)}, v9 offset:{(16*e+4*sec)*192 + hp*64}')
        a('s_waitcnt lgkmcnt(0)')
        for hp in range(2):
            for e in range(2):
                a(f's_add_u32 s29, s27, {(hp*56 + part*28 + e)*1024}')
                a(f'buffer_store_dwordx4 {vr(F+(hp*2+e)*4,4)}, v10, s[4:7], s29 offen')
    stamp(a, 4); a('s_waitcnt vmcnt(0)') if STAMPS else None; stamp(a, 5); stamp(a, 6, True)
    stamp_flush(a, NATT+8, 7, 1); stamp_flush(a, NATT+110, 7, 3)
    a.label('K2_END')
    a('s_endpgm')
    return name, 128
```
